```python
import torch

def _softmax(x, axis=-1):
    return torch.softmax(x, dim=axis)
def _gelu(x):
    return torch.nn.functional.gelu(x, approximate="tanh")
def _silu(x):
    return torch.nn.functional.silu(x)
def _sigmoid(x):
    return torch.sigmoid(x)
def _layernorm(x, axis=-1, eps=1e-5):
    m = x.mean(dim=axis, keepdim=True)
    v = x.var(dim=axis, keepdim=True, unbiased=False)
    return (x - m) / torch.sqrt(v + eps)
def _scatter_add(tgt, idx, src, axis=0):
    return tgt.clone().index_add_(axis, idx, src)
def _segment_sum(src, seg, n):
    out = torch.zeros((n,) + src.shape[1:], dtype=src.dtype)
    return out.index_add_(0, seg, src)
def _pad(x, pw):
    flat = tuple(v for pair in reversed(pw) for v in pair)
    return torch.nn.functional.pad(x, flat)

kernel_name = 'gated_mix__compressed_kv_cla__sliding_block_cached__decode'

def setup_inputs():

    _w = (lambda a: (lambda t: t.to(torch.bfloat16) if t.is_floating_point() else t)(torch.as_tensor(a)))
    def _A_setup():
        B, H, Sq, Sk, D, M = 8, 32, 1, 4096, 128, 512
        Dc = 4 * D
        return {
            "x": _w((lambda *s: torch.randn(*s, dtype=torch.bfloat16) * 0.05)(B, Sq, M)),
            "c_kv": _w((lambda *s: torch.randn(*s, dtype=torch.bfloat16) * 0.4)(B, Sk, Dc)),
            "w_q": _w((lambda *s: torch.randn(*s, dtype=torch.bfloat16) * 6.4)(M, H, D) * (M ** -0.5)),
            "w_uk": _w((lambda *s: torch.randn(*s, dtype=torch.bfloat16) * 6.4)(Dc, H, D) * (Dc ** -0.5)),
            "w_uv": _w((lambda *s: torch.randn(*s, dtype=torch.bfloat16) * 0.4)(Dc, H, D) * (Dc ** -0.5)),
            "w_o": _w((lambda *s: torch.randn(*s, dtype=torch.bfloat16) * 0.4)(H, D, M) * ((H * D) ** -0.5)),
        }
    _A_in = _A_setup()

    def _B_setup():
        B, Sq, D = 8, 1, 512
        Hq, Hkv, Sk, Dh = 32, 8, 4096, 128
        assert Hq % Hkv == 0, (Hq, Hkv)
        return {
            "x": _w((lambda *s: torch.randn(*s, dtype=torch.bfloat16) * 0.05)(B, Sq, D)),
            "k_cache": _w((lambda *s: torch.randn(*s, dtype=torch.bfloat16) * 6.4)(B, Hkv, Sk, Dh)),
            "v_cache": _w((lambda *s: torch.randn(*s, dtype=torch.bfloat16) * 0.05)(B, Hkv, Sk, Dh)),
            "wq": _w((lambda *s: torch.randn(*s, dtype=torch.bfloat16) * 6.4)(D, Hq * Dh) * (D ** -0.5)),
            "wo": _w((lambda *s: torch.randn(*s, dtype=torch.bfloat16) * 0.05)(Hq * Dh, D) * ((Hq * Dh) ** -0.5)),
        }
    _B_in = _B_setup()

    return {
        "A_x": _A_in["x"],
        "A_c_kv": _A_in["c_kv"],
        "A_w_q": _A_in["w_q"],
        "A_w_uk": _A_in["w_uk"],
        "A_w_uv": _A_in["w_uv"],
        "A_w_o": _A_in["w_o"],
        "B_x": _B_in["x"],
        "B_k_cache": _B_in["k_cache"],
        "B_v_cache": _B_in["v_cache"],
        "B_wq": _B_in["wq"],
        "B_wo": _B_in["wo"],
        "gate_w": _w((lambda *s: torch.randn(*s, dtype=torch.bfloat16) * 0.05)(512) * 16.0),
    }

def reference(A_x, A_c_kv, A_w_q, A_w_uk, A_w_uv, A_w_o, B_x, B_k_cache, B_v_cache, B_wq, B_wo, gate_w):
    def _A_ref(x, c_kv, w_q, w_uk, w_uv, w_o):
        B, Sq, M = x.shape[0], x.shape[1], x.shape[2]
        Sk = c_kv.shape[1]
        H, D = w_q.shape[1], w_q.shape[2]
        q = torch.einsum("bqm,mhd->bhqd", x, w_q)
        k = torch.einsum("bkc,chd->bhkd", c_kv, w_uk)
        v = torch.einsum("bkc,chd->bhkd", c_kv, w_uv)
        scores = torch.einsum("bhqd,bhkd->bhqk", q, k) * (D ** -0.5)
        off = Sk - Sq
        qi = torch.arange(Sq)[:, None]
        kj = torch.arange(Sk)[None, :]
        cmask = kj <= (qi + off)
        scores = torch.where(cmask[None, None], scores, -1e9)
        p = _softmax(scores, axis=-1)
        ctx = torch.einsum("bhqk,bhkd->bhqd", p, v)
        return torch.einsum("bhqd,hdm->bqm", ctx, w_o)

    def _B_ref(x, k_cache, v_cache, wq, wo):
        B, Sq, D = x.shape
        Hq, Dh = 32, 128
        Hkv, Sk = k_cache.shape[1], k_cache.shape[2]
        W = min(4096, max(256, Sk // 4))
        rep = Hq // Hkv
        q = (lambda x, *d: x.permute(*d))((x @ wq).reshape(B, Sq, Hq, Dh), 0, 2, 1, 3)
        k = (lambda x, n, axis: torch.repeat_interleave(x, n, dim=axis))(k_cache[:, :, Sk - W:, :], rep, axis=1)
        v = (lambda x, n, axis: torch.repeat_interleave(x, n, dim=axis))(v_cache[:, :, Sk - W:, :], rep, axis=1)
        scores = torch.einsum("bhqd,bhkd->bhqk", q, k) * (Dh ** -0.5)
        p = _softmax(scores, axis=-1)
        o = torch.einsum("bhqk,bhkd->bhqd", p, v)
        return (lambda x, *d: x.permute(*d))(o, 0, 2, 1, 3).reshape(B, Sq, Hq * Dh) @ wo

    x = A_x
    g = _sigmoid((x * gate_w).sum(-1, keepdims=True))
    a = _A_ref(x, A_c_kv, A_w_q, A_w_uk, A_w_uv, A_w_o)
    b = _B_ref(x, B_k_cache, B_v_cache, B_wq, B_wo)
    return g * a + (1 - g) * b
```

```python
import re
TRANS = ("v_exp_f32","v_log_f32","v_rcp_f32","v_rsq_f32","v_sqrt_f32","v_sin_f32","v_cos_f32","v_rcp_iflag_f32")
def regs_of(tok):
    tok = tok.strip()
    tok = tok.lstrip('-').strip('|')
    m = re.fullmatch(r'([vsa])(\d+)', tok)
    if m: return [(m.group(1), int(m.group(2)))]
    m = re.fullmatch(r'([vsa])\[(\d+):(\d+)\]', tok)
    if m: return [(m.group(1), i) for i in range(int(m.group(2)), int(m.group(3))+1)]
    if tok in ('vcc','vcc_lo','vcc_hi'): return [('x','vcc')]
    if tok in ('exec','exec_lo','exec_hi'): return [('x','exec')]
    if tok == 'm0': return [('x','m0')]
    return []

class Asm:
    def __init__(self):
        self.out = []
        self.t = 0
        self.ev = {}
        self.nlab = 0
        self.pads = 0
    def label(self, name):
        self.out.append(f"{name}:")
    def newlabel(self, p="L"):
        self.nlab += 1
        return f"{p}_{self.nlab}"
    def c(self, s):
        self.out.append(f"    ; {s}")
    def raw(self, s):
        self.out.append(s)
    def _need(self, kind, reg, ws):
        t = self.ev.get((kind, reg))
        if t is None: return 0
        return max(0, ws - (self.t - t - 1))
    def __call__(self, line):
        for l in line.split("\n"):
            l = l.strip()
            if l: self._emit(l)
    def _emit(self, l):
        code = l.split(";")[0].strip()
        if code.endswith(":"):
            self.out.append(code); return
        sp = code.split(None, 1)
        op = sp[0]
        rest = sp[1] if len(sp) > 1 else ""
        toks = [x.strip() for x in rest.split(",")]
        ops = []
        mods = ""
        for i, tk in enumerate(toks):
            parts = tk.split()
            if not parts: continue
            ops.append(parts[0])
            mods += " " + " ".join(parts[1:])
        need = 0
        N = self._need
        wr = []; rd = []
        if op == "s_nop":
            self.out.append("    " + l); self.t += int(ops[0], 0) + 1; return
        is_mfma = op.startswith("v_mfma")
        is_valu = op.startswith("v_") and not is_mfma
        is_vmem = op.startswith("buffer_") or op.startswith("global_")
        is_ds = op.startswith("ds_")
        dpp = ("_dpp" in op) or ("quad_perm" in rest) or ("row_" in rest)
        if is_mfma:
            p8 = "32x32" in op
            D, A, B, C = [regs_of(o) for o in ops[:4]]
            for r in A + B + C: need = max(need, N('valu', r, 2))
            for r in A + B: need = max(need, N('m4', r, 8), N('m8', r, 12))
            for r in C:
                exact = self.ev.get(('mD', r)) == (ops[3], p8)
                if not exact: need = max(need, N('m4', r, 6), N('m8', r, 10))
            for r in D:
                if ops[0] != ops[3]: need = max(need, N('m4', r, 6), N('m8', r, 10))
            need = max(need, N('valu', ('x','exec'), 4))
            self._pad(need); self.out.append("    " + l)
            for r in D:
                self.ev[('m8' if p8 else 'm4', r)] = self.t; self.ev[('mD', r)] = (ops[0], p8)
                self.ev.pop(('m4' if p8 else 'm8', r), None)
            for r in C: self.ev[('c8' if p8 else 'c4', r)] = self.t
            self.t += 1; return
        if is_valu:
            if "permlane" in op and "swap" in op:
                wr = regs_of(ops[0]) + regs_of(ops[1]); rd = list(wr)
            elif op.startswith("v_cmpx"):
                wr = regs_of(ops[0]) + [('x','exec')]; rd = sum([regs_of(o) for o in ops[1:]], [])
            elif re.match(r"v_(add|sub|subrev|addc|subb)_co", op):
                wr = regs_of(ops[0]) + regs_of(ops[1]); rd = sum([regs_of(o) for o in ops[2:]], [])
            else:
                wr = regs_of(ops[0]); rd = sum([regs_of(o) for o in ops[1:]], [])
                if op.startswith("v_fmac") or op.startswith("v_pk_fmac") or dpp or op.startswith("v_writelane") or op.startswith("v_dot2c"): rd += wr
                if op.startswith("v_cndmask") and len(ops) == 3: rd.append(('x','vcc'))
            trans = any(op.startswith(x) for x in TRANS)
            for r in rd + wr:
                if r[0] in 'va': need = max(need, N('m4', r, 8), N('m8', r, 12))
            for r in wr:
                need = max(need, N('c4', r, 3), N('c8', r, 7), N('st', r, 2))
            for r in rd:
                if r[0] in 'va':
                    if dpp or "permlane" in op: need = max(need, N('valu', r, 2))
                    if "readlane" in op or "readfirstlane" in op: need = max(need, N('valu', r, 1))
                    if not trans: need = max(need, N('trans', r, 1))
                else:
                    need = max(need, N('valu', r, 4 if ("readlane" in op or "writelane" in op) else 2))
            if dpp: need = max(need, N('valu', ('x','exec'), 5))
            if "permlane" in op or "readlane" in op or "readfirstlane" in op or "writelane" in op: need = max(need, N('valu', ('x','exec'), 4))
            self._pad(need); self.out.append("    " + l)
            for r in wr:
                self.ev[('valu', r)] = self.t
                self.ev.pop(('mD', r), None)
                if trans: self.ev[('trans', r)] = self.t
            self.t += 1; return
        if is_vmem or is_ds:
            allr = sum([regs_of(o) for o in ops], [])
            for r in allr:
                if r[0] in 'va': need = max(need, N('m4', r, 8), N('m8', r, 12))
                elif is_vmem: need = max(need, N('valu', r, 5))
            lds = re.search(r"\blds\b", rest) is not None
            if lds: need = max(need, N('salu', ('x','m0'), 1))
            isload = ("load" in op and not lds) or op.startswith("ds_read")
            if isload:
                for r in regs_of(ops[0]): need = max(need, N('st', r, 1), N('c4', r, 3), N('c8', r, 7)); self.ev.pop(('mD', r), None)
            self._pad(need); self.out.append("    " + l)
            if is_vmem and "store" in op and ("x3" in op or "x4" in op):
                for r in regs_of(ops[0] if op.startswith("buffer") else ops[1]): self.ev[('st', r)] = self.t
            self.t += 1; return
        self.out.append("    " + l)
        if ops and ops[0] == 'm0': self.ev[('salu', ('x','m0'))] = self.t
        self.t += 1
    def _pad(self, n):
        while n > 0:
            k = min(n, 8)
            self.out.append(f"    s_nop {k-1}")
            self.t += k; n -= k; self.pads += 1
    def text(self):
        return "\n".join(self.out) + "\n"
```

```python
import sys, struct, math
sys.path.insert(0, "work")
from asmlib import Asm

NAME = "gated_mix__compressed_kv_cla__sliding_block_cached__decode"
QA, QB, QABS, CTX, OB, TS, FIN, PART, WSEND = 0x10000, 0x30000, 0x80000, 0x100000, 0x180000, 0x1C0000, 0x200000, 0x400000, 0xC00000
SCALE = (128 ** -0.5) * math.log2(math.e)
def f2u(x): return struct.unpack("<I", struct.pack("<f", x))[0]
DPPM = "row_mask:0xf bank_mask:0xf"

S_W, S_WAVE, S_IDX, S_TAG, S_SPIN, S_GATE = "s2", "s3", "s4", "s5", "s6", "s7"
WS, SA, SB, SC, SD, SE, SX, SG, SO = [f"s[{i}:{i+3}]" for i in (8, 12, 16, 20, 24, 28, 32, 36, 40)]
S_LO, S_HI = "s44", "s45"
S_H, S_Q = "s46", "s47"
P = dict(x=48, ckv=50, wqa=52, wuk=54, wuv=56, woa=58, bx=60, kc=62, vc=64, wqb=66, wob=68, gate=70, out=72, dbg=74, ws=76)

def gen(dev=False, opt=None):
    opt = opt or {}
    a = Asm()
    st = [0]
    def stamp(k):
        if not dev: return
        a("s_memrealtime s[100:101]")
        a("s_waitcnt lgkmcnt(0)")
        a(f"v_writelane_b32 v255, s100, {k}")
    def srd(dst, ptr, nbytes):
        b = int(dst[2:].split(":")[0])
        a(f"s_mov_b32 s{b}, s{P[ptr]}"); a(f"s_mov_b32 s{b+1}, s{P[ptr]+1}")
        a(f"s_mov_b32 s{b+2}, {hex(nbytes)}"); a(f"s_mov_b32 s{b+3}, 0x00020000")
    def V(b, n=4): return f"v[{b}:{b+n-1}]"
    def gather(loads, tagregs):
        lp = a.newlabel("L_poll"); dn = a.newlabel("L_got")
        a.label(lp)
        for l in loads: a(l)
        a("s_waitcnt vmcnt(0)")
        for r in tagregs: a(f"v_cmpx_eq_u32 vcc, {S_TAG}, v{r}")
        a("s_cmp_eq_u64 exec, -1")
        a("s_mov_b64 exec, -1")
        a(f"s_cbranch_scc1 {dn}")
        a(f"s_sub_u32 {S_SPIN}, {S_SPIN}, 1")
        a(f"s_cmp_gt_i32 {S_SPIN}, 0")
        a(f"s_cbranch_scc1 {lp}")
        a.label(dn)
    def perm16(dst, src):
        for i in range(8):
            for p in range(2):
                a(f"v_perm_b32 v{dst+2*i+p}, v{src+4*(2*p+1)+(i>>1)}, v{src+4*(2*p)+(i>>1)}, {S_HI if i&1 else S_LO}")
    def gate_load(vd):
        a(f"s_bfe_u32 s78, {S_W}, 0x30003"); a("s_lshl_b32 s78, s78, 10")
        a(f"v_lshlrev_b32 v2, 4, v1")
        a(f"buffer_load_dwordx4 {V(vd)}, v2, {SX}, s78 offen")
        a(f"buffer_load_dwordx4 {V(vd+4)}, v2, {SG}, 0 offen")
    def gate_calc(vd):
        a("v_mov_b32 v2, 0")
        for q in range(4):
            a(f"v_lshlrev_b32 v3, 16, v{vd+q}"); a(f"v_lshlrev_b32 v4, 16, v{vd+4+q}")
            a(f"v_fmac_f32 v2, v3, v4")
            a(f"v_and_b32 v3, 0xffff0000, v{vd+q}"); a(f"v_and_b32 v4, 0xffff0000, v{vd+4+q}")
            a(f"v_fmac_f32 v2, v3, v4")
        for d in (1, 2, 4, 8):
            a(f"v_add_f32_dpp v2, v2, v2 row_ror:{d} {DPPM}")
        a("v_mov_b32 v3, v2"); a("v_permlane16_swap_b32 v2, v3"); a("v_add_f32 v2, v2, v3")
        a("v_mov_b32 v3, v2"); a("v_permlane32_swap_b32 v2, v3"); a("v_add_f32 v2, v2, v3")
        a(f"v_mul_f32 v2, {hex(f2u(-math.log2(math.e)))}, v2")
        a("v_exp_f32 v2, v2"); a("v_add_f32 v2, 1.0, v2"); a("v_rcp_f32 v2, v2")
        a(f"v_readfirstlane_b32 {S_GATE}, v2")
    def gemm128(wop, act, acc, ldsbase, vlw, woffs, vrd, rd):
        for i in range(8):
            a(f"v_mfma_f32_16x16x16_bf16 {V(acc+4*i)}, {V(wop+2*i,2)}, {V(act,2)}, 0")
        a("s_mov_b64 exec, s[96:97]")
        for i in range(8):
            a(f"ds_write_b128 v{vlw}, {V(acc+4*i)} offset:{woffs[i]}")
        a("s_mov_b64 exec, -1")
        a("s_waitcnt lgkmcnt(0)")
        a("s_barrier")
        skip = a.newlabel("L_nored")
        a(f"s_cmp_ge_u32 {S_WAVE}, 4")
        a(f"s_cbranch_scc1 {skip}")
        for s in range(8):
            a(f"ds_read_b128 {V(acc+4*s)}, v{vrd} offset:{s*4096}")
        for s in range(1, 8):
            a(f"s_waitcnt lgkmcnt({7-s})")
            src = acc if s == 1 else rd
            a(f"v_pk_add_f32 {V(rd,2)}, {V(src,2)}, {V(acc+4*s,2)}")
            a(f"v_pk_add_f32 {V(rd+2,2)}, {V(src+2,2)}, {V(acc+4*s+2,2)}")
        for k in range(3):
            a(f"v_perm_b32 v{rd+4+k}, v{rd+k}, v{rd+3}, s{92+k}")
        return skip
    def unpack24(g, t):
        a(f"v_perm_b32 v{t}, v{g+1}, v{g}, s90")
        a(f"v_perm_b32 v{t}, v{g+2}, v{t}, s91")

    a(f"s_cmp_ge_u32 {S_W}, 256")
    a("s_cbranch_scc1 L_end")
    a("s_load_dwordx16 s[48:63], s[0:1], 0")
    a("s_load_dwordx8 s[64:71], s[0:1], 64")
    a("s_load_dwordx4 s[72:75], s[0:1], 96")
    a("s_load_dwordx2 s[76:77], s[0:1], 112")
    a("v_lshrrev_b32 v2, 6, v0")
    a("v_and_b32 v1, 63, v0")
    a(f"v_readfirstlane_b32 {S_WAVE}, v2")
    a(f"s_and_b32 s78, {S_W}, 7"); a(f"s_lshr_b32 s79, {S_W}, 4"); a(f"s_lshl3_add_u32 {S_IDX}, s79, s78")
    a(f"s_lshr_b32 {S_H}, {S_IDX}, 2"); a(f"s_and_b32 {S_Q}, {S_IDX}, 3")
    a(f"s_mov_b32 {S_LO}, 0x05040100"); a(f"s_mov_b32 {S_HI}, 0x07060302")
    a(f"s_mov_b32 {S_SPIN}, 20000"); a(f"s_mov_b32 {S_GATE}, 0")
    a("s_mov_b32 s90, 0x0c04000c"); a("s_mov_b32 s91, 0x0402010c")
    a("s_mov_b32 s92, 0x07060501"); a("s_mov_b32 s93, 0x07060502"); a("s_mov_b32 s94, 0x07060503")
    a("s_mov_b32 s96, 0x00ff00ff"); a("s_mov_b32 s97, 0x00ff00ff")
    a("v_lshrrev_b32 v5, 4, v1")
    a("v_and_b32 v6, 15, v1")
    a("v_lshlrev_b32 v7, 4, v1")
    if dev: a("v_mov_b32 v255, 0")
    a(f"s_bitcmp1_b32 {S_W}, 3")
    a("s_waitcnt lgkmcnt(0)")
    a(f"s_load_dword {S_TAG}, s[76:77], 0")
    srd(WS, "ws", WSEND); srd(SX, "x", 8192); srd(SG, "gate", 1024); srd(SO, "out", 8192)
    a("s_cbranch_scc0 L_A")

    a.c("==== B role")
    LB_S1, LB_QA, LB_QB, LB_ML, LB_LSE, LB_O, LB_R = 0, 40960, 43520, 44544, 44800, 49152, 65536
    a(f"s_cmp_lt_u32 {S_IDX}, 64")
    a(f"s_cselect_b32 s12, s{P['wqa']}, s{P['wqb']}"); a(f"s_cselect_b32 s13, s{P['wqa']+1}, s{P['wqb']+1}")
    a("s_mov_b32 s14, 0x400000"); a("s_mov_b32 s15, 0x00020000")
    a(f"s_and_b32 s78, {S_IDX}, 63"); a("s_lshl_b32 s79, s78, 7")
    a(f"s_lshl_b32 s80, {S_WAVE}, 19"); a("s_add_u32 s80, s80, s79")
    a("v_lshrrev_b32 v2, 3, v1"); a("v_lshlrev_b32 v2, 16, v2"); a("v_and_b32 v3, 7, v1"); a("v_lshl_add_u32 v2, v3, 4, v2")
    for e in range(8):
        a(f"buffer_load_dwordx4 {V(8+4*e)}, v2, {SA}, s80 offen nt")
        if e < 7: a("s_add_u32 s80, s80, 8192")
    a("v_lshlrev_b32 v4, 10, v3"); a("v_lshrrev_b32 v2, 3, v1"); a("v_lshl_add_u32 v4, v2, 4, v4")
    a(f"s_lshl_b32 s81, {S_WAVE}, 7")
    a(f"buffer_load_dwordx4 {V(40)}, v4, {SX}, s81 offen")
    srd(SB, "wuk", 0x400000)
    a(f"s_lshl_b32 s82, {S_Q}, 20"); a(f"s_lshl_b32 s83, {S_WAVE}, 17"); a("s_add_u32 s82, s82, s83")
    a(f"s_lshl_b32 s83, {S_H}, 8"); a("s_add_u32 s82, s82, s83")
    a("v_lshlrev_b32 v2, 13, v6"); a("v_lshl_add_u32 v2, v5, 4, v2")
    for s in range(4):
        a(f"buffer_load_dwordx4 {V(44+4*s)}, v2, {SB}, s82 offen offset:{64*s} nt")
    srd(SC, "wob", 0x400000); srd(SD, "kc", 0x4000000); srd(SE, "vc", 0x4000000)
    stamp(0)
    a("v_bfe_u32 v2, v1, 3, 1"); a("v_mul_u32_u24 v2, 2560, v2"); a("v_and_b32 v4, 1, v5"); a("v_lshl_add_u32 v2, v4, 7, v2")
    a("v_lshl_add_u32 v2, v3, 4, v2"); a(f"s_mul_i32 s83, {S_WAVE}, 5120"); a("v_add_u32 v128, s83, v2")
    a("v_and_b32 v2, 3, v0"); a("v_bfe_u32 v3, v0, 7, 1"); a("v_lshl_add_u32 v2, v3, 2, v2"); a("v_mul_u32_u24 v2, 320, v2")
    a("v_lshrrev_b32 v4, 8, v0"); a("v_lshl_add_u32 v2, v4, 7, v2"); a("v_and_b32 v129, 0x7c, v0"); a("v_add_u32 v129, v129, v2")
    a("v_bfe_u32 v2, v0, 4, 3"); a("v_lshl_add_u32 v2, v2, 1, v3")
    a("v_bfe_u32 v3, v0, 2, 2"); a("v_lshl_add_u32 v3, v4, 2, v3")
    a(f"s_cmp_lt_u32 {S_IDX}, 64")
    a("s_cselect_b32 s83, 128, 16"); a("s_cselect_b32 s84, 16, 16384"); a(f"s_cselect_b32 s85, {QA>>16}, {QB>>16}"); a("s_lshl_b32 s85, s85, 16")
    a("s_lshl_b32 s86, s83, 4"); a("s_mul_i32 s86, s86, s78"); a("s_add_u32 s85, s85, s86")
    a("v_mul_u32_u24 v2, s83, v2"); a("v_mad_u32_u24 v130, v3, s84, v2")
    a("s_waitcnt vmcnt(4)")
    stamp(1)
    for i in range(8):
        for p in range(4):
            a(f"v_perm_b32 v{64+4*i+p}, v{8+4*(2*p+1)+(i>>1)}, v{8+4*(2*p)+(i>>1)}, {S_HI if i&1 else S_LO}")
        if i >= 1: a(f"v_mfma_f32_16x16x32_bf16 {V(96+4*(i-1))}, {V(40)}, {V(64+4*(i-1))}, 0")
    a(f"v_mfma_f32_16x16x32_bf16 {V(96+28)}, {V(40)}, {V(64+28)}, 0")
    a("s_mov_b32 exec_lo, 0x00ff00ff"); a("s_mov_b32 exec_hi, 0xff00ff00")
    for i in range(8):
        a(f"ds_write_b128 v128, {V(96+4*i)} offset:{LB_S1+320*i}")
    a("s_mov_b64 exec, -1")
    a("s_waitcnt lgkmcnt(0)")
    a(f"s_add_u32 {S_TAG}, {S_TAG}, 0x9e3779b9")
    a("s_barrier")
    for s in range(8):
        a(f"ds_read2st64_b32 {V(64+2*s,2)}, v129 offset0:{20*s} offset1:{20*s+10}")
    a(f"v_mov_b32 v135, {S_TAG}")
    for s in range(1, 8):
        a(f"s_waitcnt lgkmcnt({7-s})")
        a(f"v_pk_add_f32 v[64:65], v[64:65], {V(64+2*s,2)}")
    a("v_add_f32 v64, v64, v65")
    a(f"v_mov_b32_dpp v65, v64 quad_perm:[1,1,3,3] {DPPM}")
    a("v_cvt_pk_bf16_f32 v132, v64, v65")
    a(f"v_mov_b32_dpp v133, v132 quad_perm:[2,2,2,2] {DPPM}")
    a("s_mov_b32 exec_lo, 0x11111111"); a("s_mov_b32 exec_hi, 0x11111111")
    a(f"buffer_store_dwordx4 {V(132)}, v130, {WS}, s85 offen sc1")
    a("s_mov_b64 exec, -1")
    stamp(2)
    a(f"s_lshr_b32 s78, {S_IDX}, 4"); a(f"s_bfe_u32 s79, {S_IDX}, 0x30001")
    a(f"s_cmp_lt_u32 {S_WAVE}, 4")
    a("s_cbranch_scc0 L_B_qb")
    a(f"s_lshl_b32 s80, {S_H}, 12"); a(f"s_lshl_b32 s81, {S_WAVE}, 10"); a("s_add_u32 s80, s80, s81"); a(f"s_add_u32 s80, s80, {QA}")
    a("v_and_b32 v2, 7, v1"); a("v_mul_u32_u24 v2, 272, v2"); a("v_and_b32 v3, 0x38, v1"); a("v_add_u32 v2, v2, v3")
    a(f"s_lshl_b32 s81, {S_WAVE}, 6"); a(f"s_add_u32 s81, s81, {LB_QA}")
    a("s_branch L_B_qg")
    a.label("L_B_qb")
    a("s_lshl_b32 s80, s78, 14"); a("s_lshl_b32 s81, s79, 11"); a("s_add_u32 s80, s80, s81")
    a(f"s_and_b32 s81, {S_WAVE}, 1"); a("s_lshl_b32 s82, s81, 10"); a("s_add_u32 s80, s80, s82"); a(f"s_add_u32 s80, s80, {QB}")
    a("v_lshlrev_b32 v2, 3, v1")
    a("s_lshl_b32 s81, s81, 9"); a(f"s_add_u32 s81, s81, {LB_QB}")
    a.label("L_B_qg")
    a("v_add_u32 v2, s81, v2")
    gather([f"buffer_load_dwordx4 {V(64)}, v7, {WS}, s80 offen sc1"], [67])
    a("ds_write_b64 v2, v[64:65]")
    a("v_and_b32 v2, 7, v1"); a("v_mul_u32_u24 v2, 272, v2"); a("v_lshl_add_u32 v2, v5, 4, v2")
    a("v_bfe_u32 v3, v1, 2, 2"); a("v_lshlrev_b32 v3, 8, v3"); a("v_lshl_add_u32 v3, v5, 6, v3")
    a("v_and_b32 v4, 3, v1"); a("v_lshl_add_u32 v3, v4, 4, v3")
    a("s_waitcnt lgkmcnt(0)")
    a("s_barrier")
    stamp(3)
    for s in range(4):
        a(f"ds_read_b128 {V(64+4*s)}, v2 offset:{LB_QA+64*s}")
    a(f"ds_read_b128 {V(152)}, v3 offset:{LB_QB}")
    a("v_and_b32 v2, 7, v1"); a("v_lshlrev_b32 v2, 16, v2"); a("v_lshrrev_b32 v4, 5, v1"); a("v_lshl_add_u32 v2, v4, 11, v2")
    a("v_and_b32 v4, 1, v5"); a("v_lshl_add_u32 v2, v4, 4, v2")
    a(f"s_lshr_b32 s80, {S_H}, 4"); a("s_lshl_b32 s80, s80, 15"); a(f"s_lshl_b32 s81, {S_WAVE}, 12"); a("s_add_u32 s80, s80, s81")
    a(f"s_lshl_b32 s81, {S_Q}, 9"); a("s_add_u32 s80, s80, s81"); a(f"s_and_b32 s81, {S_H}, 15"); a("s_lshl_b32 s81, s81, 5")
    a("s_add_u32 s80, s80, s81"); a(f"s_add_u32 s80, s80, {QABS}")
    for s in range(4):
        a(f"s_waitcnt lgkmcnt({4-s})")
        a(f"v_mfma_f32_16x16x32_bf16 {V(96)}, {V(44+4*s)}, {V(64+4*s)}, {'0' if s==0 else V(96)}")
    a(f"s_mov_b32 s81, {hex(f2u(SCALE))}")
    for r in range(4): a(f"v_mul_f32 v{96+r}, s81, v{96+r}")
    a("v_cvt_pk_bf16_f32 v132, v96, v97"); a("v_cvt_pk_bf16_f32 v133, v98, v99")
    a("s_mov_b64 exec, s[96:97]")
    a(f"buffer_store_dwordx4 {V(132)}, v2, {WS}, s80 offen sc1")
    a("s_mov_b64 exec, -1")
    stamp(4)
    a(f"s_cmp_lg_u32 {S_WAVE}, 7")
    a("s_cbranch_scc1 L_B_ng")
    gate_load(192)
    a.label("L_B_ng")
    a(f"s_lshr_b32 s80, {S_IDX}, 1"); a("s_lshl_b32 s80, s80, 20"); a(f"s_and_b32 s81, {S_IDX}, 1"); a("s_lshl_b32 s81, s81, 17")
    a("s_add_u32 s80, s80, s81"); a(f"s_lshl_b32 s81, {S_WAVE}, 14"); a("s_add_u32 s80, s80, s81"); a(f"s_add_u32 s80, s80, {3072*256}")
    for k in range(1, 4): a(f"s_add_u32 s{80+k}, s80, {4096*k}")
    for e in range(16):
        a(f"buffer_load_dwordx4 {V(8+4*e)}, v3, {SD}, s{80+(e>>2)} offen offset:{1024*(e&3)} nt")
    for e in range(16):
        a(f"buffer_load_dwordx4 {V(72+4*e)}, v7, {SE}, s{80+(e>>2)} offen offset:{1024*(e&3)} nt")
    a(f"s_lshl_b32 s84, {S_H}, 17"); a(f"s_lshl_b32 s85, {S_WAVE}, 14"); a("s_add_u32 s84, s84, s85"); a(f"s_lshl_b32 s85, {S_Q}, 8"); a("s_add_u32 s84, s84, s85")
    a("v_lshlrev_b32 v2, 12, v5"); a("v_lshl_add_u32 v2, v6, 4, v2")
    for e in range(4):
        a(f"buffer_load_dwordx4 {V(136+4*e)}, v2, {SC}, s84 offen offset:{1024*e} nt")
    a("s_waitcnt lgkmcnt(0)")
    def s_from(e):
        d = 160 + 4*(e & 3)
        a(f"v_mov_b32_dpp v{200+e}, v{d} quad_perm:[0,0,0,0] {DPPM}")
        for r in range(1, 4):
            a(f"v_add_f32_dpp v{200+e}, v{d+r}, v{200+e} quad_perm:[{r},{r},{r},{r}] {DPPM}")
    for e in range(16):
        a(f"s_waitcnt vmcnt({35-e})")
        a(f"v_mfma_f32_16x16x32_bf16 {V(160+4*(e&3))}, {V(8+4*e)}, {V(152)}, 0")
        if e >= 2: s_from(e-2)
    s_from(14); s_from(15)
    stamp(5)
    a("v_max3_f32 v2, v200, v201, v202")
    for e in range(3, 15, 2): a(f"v_max3_f32 v2, v2, v{200+e}, v{201+e}")
    a("v_max_f32 v2, v2, v215")
    a("v_mov_b32 v3, v2"); a("v_permlane16_swap_b32 v2, v3"); a("v_max_f32 v2, v2, v3")
    a("v_mov_b32 v3, v2"); a("v_permlane32_swap_b32 v2, v3"); a("v_max_f32 v2, v2, v3")
    a(f"s_mov_b32 s81, {hex(f2u(SCALE))}")
    a("v_mul_f32 v216, s81, v2")
    for e in range(16): a(f"v_fma_f32 v{200+e}, v{200+e}, s81, -v216")
    for e in range(16): a(f"v_exp_f32 v{200+e}, v{200+e}")
    a("v_add_f32 v217, v200, v201")
    for e in range(2, 16): a(f"v_add_f32 v217, v217, v{200+e}")
    a("v_mov_b32 v3, v217"); a("v_permlane16_swap_b32 v217, v3"); a("v_add_f32 v217, v217, v3")
    a("v_mov_b32 v3, v217"); a("v_permlane32_swap_b32 v217, v3"); a("v_add_f32 v217, v217, v3")
    a("v_bfe_u32 v4, v1, 2, 2"); a("v_lshlrev_b32 v2, 6, v4")
    a(f"s_lshl_b32 s82, {S_WAVE}, 3"); a("v_add_u32 v3, s82, v2")
    a(f"ds_write_b64 v3, v[216:217] offset:{LB_ML}")
    a(f"s_cmp_lg_u32 {S_WAVE}, 7")
    a("s_cbranch_scc1 L_B_ng2")
    a("v_mov_b32 v218, v2")
    gate_calc(192)
    a("v_mov_b32 v2, v218"); a("v_bfe_u32 v4, v1, 2, 2")
    a.label("L_B_ng2")
    a("s_waitcnt lgkmcnt(0)")
    a("s_barrier")
    for k in range(4): a(f"ds_read_b128 {V(160+4*k)}, v2 offset:{LB_ML+16*k}")
    a("s_waitcnt lgkmcnt(0)")
    a("v_max3_f32 v218, v160, v162, v164"); a("v_max3_f32 v218, v218, v166, v168"); a("v_max3_f32 v218, v218, v170, v172"); a("v_max_f32 v218, v218, v174")
    for k in range(8): a(f"v_sub_f32 v{160+2*k}, v{160+2*k}, v218")
    for k in range(8): a(f"v_exp_f32 v{160+2*k}, v{160+2*k}")
    a("v_mul_f32 v219, v160, v161")
    for k in range(1, 8): a(f"v_fmac_f32 v219, v{160+2*k}, v{161+2*k}")
    a("v_sub_f32 v216, v216, v218"); a("v_exp_f32 v216, v216"); a("v_rcp_f32 v217, v219"); a("v_log_f32 v219, v219")
    a("v_mul_f32 v216, v216, v217"); a("v_add_f32 v219, v219, v218")
    a("v_lshlrev_b32 v4, 2, v4")
    a(f"ds_write_b32 v4, v219 offset:{LB_LSE}")
    for e in range(16): a(f"v_mul_f32 v{200+e}, v{200+e}, v216")
    for k in range(8): a(f"v_cvt_pk_bf16_f32 v{220+k}, v{200+2*k}, v{201+2*k}")
    a(f"s_lshl_b32 s82, {S_WAVE}, 11"); a(f"s_add_u32 s82, s82, {LB_O}"); a("v_add_u32 v228, s82, v7")
    a("v_lshlrev_b32 v229, 4, v0")
    a("v_lshlrev_b32 v230, 13, v5"); a("v_lshl_add_u32 v230, v6, 9, v230")
    a("s_lshl_b32 s82, s79, 15"); a(f"s_lshl_b32 s83, {S_WAVE}, 8"); a("s_add_u32 s82, s82, s83")
    a(f"s_and_b32 s83, {S_IDX}, 1"); a("s_lshl_b32 s83, s83, 7"); a("s_add_u32 s82, s82, s83")
    a("s_lshl_b32 s83, s78, 4"); a("s_add_u32 s82, s82, s83"); a(f"s_add_u32 s82, s82, {OB}")
    a("v_lshlrev_b32 v231, 2, v5")
    stamp(6)
    for z in range(2):
        for p in range(4):
            e = 8*z + 2*p
            a(f"s_waitcnt vmcnt({4+14-e})")
            for i in range(8):
                a(f"v_perm_b32 v{8+32*z+4*i+p}, v{72+4*(e+1)+(i>>1)}, v{72+4*e+(i>>1)}, {S_HI if i&1 else S_LO}")
        for i in range(8):
            a(f"v_mfma_f32_16x16x32_bf16 {V(160+4*i)}, {V(220+4*z)}, {V(8+32*z+4*i)}, {'0' if z==0 else V(160+4*i)}")
    for x in range(2):
        for k in range(1, 4): a(f"v_mov_b32 v{160+16*x+k}, v{160+16*x+4*k}")
        a(f"ds_write_b128 v228, {V(160+16*x)} offset:{1024*x}")
    a("s_waitcnt lgkmcnt(0)")
    a("s_barrier")
    stamp(7)
    a(f"s_cmp_ge_u32 {S_WAVE}, 2")
    a("s_cbranch_scc1 L_B_s5")
    for s in range(8): a(f"ds_read_b128 {V(160+4*s)}, v229 offset:{LB_O+2048*s}")
    a(f"ds_read_b32 v134, v231 offset:{LB_LSE}")
    for s in range(1, 8):
        a(f"s_waitcnt lgkmcnt({8-s})")
        a(f"v_pk_add_f32 v[160:161], v[160:161], {V(160+4*s,2)}"); a(f"v_pk_add_f32 v[162:163], v[162:163], {V(162+4*s,2)}")
    a("v_cvt_pk_bf16_f32 v132, v160, v161"); a("v_cvt_pk_bf16_f32 v133, v162, v163")
    a(f"v_mov_b32 v135, {S_TAG}")
    a("s_waitcnt lgkmcnt(0)")
    a(f"buffer_store_dwordx4 {V(132)}, v230, {WS}, s82 offen sc1")
    a.label("L_B_s5")
    a("s_waitcnt vmcnt(1)")
    a("s_waitcnt vmcnt(0)")
    perm16(8, 136)
    a(f"s_lshl_b32 s80, {S_H}, 13"); a(f"s_lshl_b32 s81, {S_WAVE}, 10"); a("s_add_u32 s80, s80, s81"); a(f"s_add_u32 s80, s80, {OB}")
    stamp(8)
    gather([f"buffer_load_dwordx4 {V(64)}, v7, {WS}, s80 offen sc1"], [67])
    stamp(9)
    a(f"v_sub_f32_dpp v2, v66, v66 row_ror:8 {DPPM}")
    a("v_exp_f32 v2, v2"); a("v_lshlrev_b32 v68, 16, v64"); a("v_add_f32 v2, 1.0, v2"); a("v_and_b32 v69, 0xffff0000, v64")
    a("v_rcp_f32 v2, v2"); a("v_lshlrev_b32 v70, 16, v65"); a("v_and_b32 v71, 0xffff0000, v65")
    for k in range(4): a(f"v_mul_f32 v{68+k}, v{68+k}, v2")
    for k in range(4): a(f"v_add_f32_dpp v{72+k}, v{68+k}, v{68+k} row_ror:8 {DPPM}")
    a("v_cvt_pk_bf16_f32 v76, v72, v73"); a("v_cvt_pk_bf16_f32 v77, v74, v75")
    a(f"s_add_u32 s88, {S_H}, 32")
    a("s_branch L_S5")

    a.label("L_A")
    a.c("==== A role")
    QR = 131072
    LA_P, LA_MX, LA_AL, LA_M = QR, QR + 8192, QR + 8704, QR + 8832
    LA_ACT, LA_R4 = 0, 8192
    srd(SA, "ckv", 0x2000000)
    a(f"s_cmp_ge_u32 {S_WAVE}, 4")
    a("s_cbranch_scc1 L_A_qk0")
    a(f"s_and_b32 s78, {S_IDX}, 7"); a("s_lshl_b32 s78, s78, 22"); a(f"s_lshr_b32 s79, {S_IDX}, 3"); a("s_lshl_b32 s79, s79, 18")
    a("s_add_u32 s78, s78, s79"); a(f"s_lshl_b32 s79, {S_WAVE}, 15"); a("s_add_u32 s78, s78, s79")
    a("s_mov_b32 m0, s79")
    def fsw(k): return ((k & 7) << 1) | ((k >> 3) & 1)
    for e in range(32):
        if e < 16: a(f"v_xor_b32 v{136+e}, {fsw(e)*16}, v7")
        a(f"buffer_load_dwordx4 v{136+(e&15)}, {SA}, s78 offen offset:{1024*(e&3)} nt lds")
        if (e & 3) == 3:
            a("s_add_u32 s78, s78, 4096")
            if e < 31: a("s_add_u32 m0, m0, 4096")
    a(f"s_add_u32 s78, s78, {131072-32768}")
    for e in range(32):
        a(f"buffer_load_dwordx4 {V(8+4*e)}, v{136+(e&15)}, {SA}, s78 offen offset:{1024*(e&3)} nt")
        if (e & 3) == 3 and e < 31: a("s_add_u32 s78, s78, 4096")
    a("v_add_u32 v252, s79, v7")
    stamp(0)
    a("s_branch L_A_c0")
    a.label("L_A_qk0")
    a(f"s_cmp_lg_u32 {S_WAVE}, 7")
    a("s_cbranch_scc1 L_A_ng")
    gate_load(192)
    a("s_waitcnt vmcnt(0)")
    gate_calc(192)
    a.label("L_A_ng")
    a(f"s_sub_u32 s79, {S_WAVE}, 4"); a("s_lshl_b32 s80, s79, 15")
    a("v_and_b32 v2, 7, v6"); a("v_lshlrev_b32 v2, 1, v2"); a("v_lshrrev_b32 v3, 3, v6"); a("v_or_b32 v2, v2, v3"); a("v_lshlrev_b32 v2, 4, v2")
    a("v_lshlrev_b32 v3, 10, v6"); a("v_lshl_add_u32 v3, v5, 8, v3"); a("v_add_u32 v3, s80, v3")
    for s in range(16): a(f"v_xad_u32 v{136+s}, v2, {s*16}, v3" if s*16 <= 64 else f"v_xor_b32 v{136+s}, {s*16}, v2")
    for s in range(16):
        if s*16 > 64: a(f"v_add_u32 v{136+s}, v{136+s}, v3")
    a("v_mov_b32 v253, 0xff7fffff"); a("v_mov_b32 v254, 0xff7fffff")
    a.label("L_A_c0")
    a("v_lshrrev_b32 v2, 2, v1")
    a("v_and_b32 v3, 7, v2"); a("v_lshlrev_b32 v3, 1, v3"); a("v_lshrrev_b32 v4, 5, v1"); a("v_or_b32 v3, v3, v4")
    a("v_bfe_u32 v4, v1, 1, 1"); a(f"s_lshl_b32 s80, {S_WAVE}, 3"); a("v_add_u32 v4, s80, v4"); a("v_xor_b32 v3, v3, v4")
    a("v_lshlrev_b32 v2, 10, v2"); a("v_and_b32 v4, 1, v1"); a("v_lshl_add_u32 v2, v4, 3, v2")
    for v in range(4):
        a(f"v_xor_b32 v4, {2*v}, v3"); a(f"v_lshl_add_u32 v{240+v}, v4, 4, v2"); a(f"v_add_u32 v{244+v}, 0x10000, v{240+v}")
    for r in range(40): a(f"v_mov_b32 v{200+r}, 0")
    for r in range(4): a(f"v_mov_b32 v{248+r}, 0x3f803f80")
    a("s_waitcnt lgkmcnt(0)")
    a(f"s_add_u32 {S_TAG}, {S_TAG}, 0x9e3779b9")
    srd(SB, "wuv", 0x400000); srd(SC, "woa", 0x400000)
    a("s_mov_b32 s89, 0")
    a(f"s_cmp_ge_u32 {S_WAVE}, 4")
    a("s_cbranch_scc1 L_A_qk1")
    a("s_waitcnt vmcnt(32)")
    stamp(1)
    a("s_barrier")
    a("s_barrier")
    a.label("L_A_ld_loop")
    a("s_barrier")
    a("s_branch L_A_pv")
    a.label("L_A_qk1")
    a(f"s_and_b32 s78, {S_IDX}, 7"); a("s_lshl_b32 s78, s78, 16"); a("s_lshl_b32 s80, s79, 14"); a("s_add_u32 s78, s78, s80"); a(f"s_add_u32 s80, s78, {QABS}")
    for k in range(1, 4): a(f"s_add_u32 s{80+k}, s80, {4096*k}")
    a("v_lshlrev_b32 v2, 3, v1"); a("s_lshl_b32 s84, s79, 13"); a(f"s_add_u32 s84, s84, {QR}"); a("v_add_u32 v2, s84, v2")
    stamp(0)
    gather([f"buffer_load_dwordx4 {V(8+4*e)}, v7, {WS}, s80 offen offset:{1024*e} sc1" for e in range(2)], [11, 15])
    stamp(1)
    gather([f"buffer_load_dwordx4 {V(8+4*e)}, v7, {WS}, s{80+(e>>2)} offen offset:{1024*(e&3)} sc1" for e in range(2, 16)], [11+4*e for e in range(2, 16)])
    for e in range(16): a(f"ds_write_b64 v2, {V(8+4*e,2)} offset:{512*e}")
    a(f"v_add_u32 v3, {QR}, v7")
    a("s_waitcnt lgkmcnt(0)")
    stamp(2)
    a("s_barrier")
    for k in range(32): a(f"ds_read_b128 {V(8+4*k)}, v3 offset:{1024*k}")
    a("s_waitcnt lgkmcnt(0)")
    a("s_barrier")
    stamp(3)
    a.label("L_A_qk_loop")
    def rdA(s):
        for T in range(2): a(f"ds_read_b128 {V(168+8*(s&3)+4*T)}, v{136+s} offset:{16384*T}")
    for s in range(4): rdA(s)
    for s in range(16):
        a(f"s_waitcnt lgkmcnt({min(6, 2*(15-s))})")
        for T in range(2):
            for u in range(2):
                acc = 152 + 8*T + 4*u
                a(f"v_mfma_f32_16x16x32_bf16 {V(acc)}, {V(168+8*(s&3)+4*T)}, {V(8+64*u+4*s)}, {'0' if s==0 else V(acc)}")
        if s + 4 < 16: rdA(s+4)
    a("v_lshrrev_b32 v4, 5, v1"); a("v_lshlrev_b32 v4, 8, v4"); a("v_lshl_add_u32 v4, v6, 4, v4")
    a("s_lshl_b32 s80, s79, 2"); a(f"s_add_u32 s80, s80, {LA_MX}"); a("v_add_u32 v4, s80, v4")
    a(f"v_lshlrev_b32 v168, 4, v6"); a(f"v_add_u32 v168, {LA_MX}, v168")
    for u in range(2):
        b0, b1 = 152+4*u, 160+4*u
        a(f"v_max3_f32 v{2+u}, v{b0}, v{b0+1}, v{b0+2}"); a(f"v_max3_f32 v{2+u}, v{2+u}, v{b0+3}, v{b1}")
        a(f"v_max3_f32 v{2+u}, v{2+u}, v{b1+1}, v{b1+2}"); a(f"v_max_f32 v{2+u}, v{2+u}, v{b1+3}")
    a("v_permlane32_swap_b32 v2, v3"); a("v_max_f32 v2, v2, v3")
    a("v_mov_b32 v3, v2"); a("v_permlane16_swap_b32 v2, v3"); a("v_max_f32 v2, v2, v3")
    a("ds_write_b32 v4, v2")
    a("s_waitcnt lgkmcnt(0)")
    a("s_barrier")
    a(f"ds_read_b128 {V(172)}, v168"); a(f"ds_read_b128 {V(176)}, v168 offset:256")
    a("s_lshl_b32 s80, s79, 11"); a(f"s_add_u32 s80, s80, {LA_P}"); a("v_add_u32 v4, s80, v7")
    a(f"v_lshlrev_b32 v169, 2, v6"); a(f"v_add_u32 v169, {LA_AL}, v169")
    for u in range(2):
        a(f"s_waitcnt lgkmcnt({1-u})")
        a(f"v_max3_f32 v{2+u}, v{172+4*u}, v{173+4*u}, v{174+4*u}"); a(f"v_max3_f32 v{2+u}, v{2+u}, v{175+4*u}, v{253+u}")
        regs = [152+4*u+r for r in range(4)] + [160+4*u+r for r in range(4)]
        for r in regs: a(f"v_sub_f32 v{r}, v{r}, v{2+u}")
        for r in regs: a(f"v_exp_f32 v{r}, v{r}")
        for k in range(4): a(f"v_cvt_pk_bf16_f32 v{180+4*u+k}, v{regs[2*k]}, v{regs[2*k+1]}")
        a(f"ds_write_b128 v4, {V(180+4*u)} offset:{1024*u}")
    for u in range(2):
        a(f"v_sub_f32 v{253+u}, v{253+u}, v{2+u}"); a(f"v_exp_f32 v{253+u}, v{253+u}")
        a(f"ds_write_b32 v169, v{2+u} offset:{128+64*u}")
        a(f"ds_write_b32 v169, v{253+u} offset:{64*u}")
        a(f"v_mov_b32 v{253+u}, v{2+u}")
    a("s_waitcnt lgkmcnt(0)")
    a.label("L_A_pv")
    a("s_barrier")
    a(f"v_add_u32 v3, {LA_P}, v7")
    a(f"v_lshlrev_b32 v2, 4, v5"); a(f"v_add_u32 v2, {LA_AL}, v2")
    def rdPV(j):
        for u in range(2): a(f"ds_read_b128 {V(152+8*(j&1)+4*u)}, v3 offset:{2048*j+1024*u}")
        for v in range(4):
            for T in range(2):
                a(f"ds_read_b64_tr_b16 {V(168+16*(j&1)+4*v+2*T,2)}, v{(240 if j<2 else 244)+v} offset:{32768*(j&1)+16384*T}")
    a(f"ds_read_b128 {V(184)}, v2"); a(f"ds_read_b128 {V(188)}, v2 offset:64")
    rdPV(0)
    a("s_cmp_eq_u32 s89, 0")
    a("s_cbranch_scc1 L_A_now")
    stamp(6)
    a(f"s_lshl_b32 s80, {S_Q}, 7"); a(f"s_lshr_b32 s81, {S_WAVE}, 2"); a("s_lshl_b32 s81, s81, 6"); a("s_add_u32 s80, s80, s81")
    a(f"s_and_b32 s81, {S_WAVE}, 3"); a("s_lshl2_add_u32 s80, s81, s80"); a("s_lshl_b32 s80, s80, 13"); a(f"s_lshl_b32 s81, {S_H}, 8"); a("s_add_u32 s80, s80, s81")
    a("v_lshlrev_b32 v4, 13, v5"); a("v_lshl_add_u32 v4, v6, 4, v4")
    for e in range(4):
        a(f"buffer_load_dwordx4 {V(40+4*e)}, v4, {SB}, s80 offen nt")
        if e < 3: a(f"s_add_u32 s80, s80, {16*8192}")
    a(f"s_lshl_b32 s80, {S_H}, 7"); a(f"s_add_u32 s80, s80, {S_WAVE}"); a("s_lshl_b32 s80, s80, 10"); a(f"s_lshl_b32 s81, {S_Q}, 8"); a("s_add_u32 s80, s80, s81")
    a("v_lshlrev_b32 v4, 15, v5"); a("v_lshl_add_u32 v4, v6, 4, v4")
    for e in range(4):
        a(f"buffer_load_dwordx4 {V(56+4*e)}, v4, {SC}, s80 offen nt")
        if e < 3: a("s_add_u32 s80, s80, 8192")
    a("s_waitcnt lgkmcnt(10)")
    for u in range(2):
        for v in range(5):
            acc = 200 + 16*u + 4*v if v < 4 else 232 + 4*u
            a(f"v_pk_mul_f32 {V(acc,2)}, {V(acc,2)}, {V(184+4*u,2)}"); a(f"v_pk_mul_f32 {V(acc+2,2)}, {V(acc+2,2)}, {V(186+4*u,2)}")
    a.label("L_A_now")
    for j in range(4):
        a("s_waitcnt lgkmcnt(0)")
        if j < 3: rdPV(j+1)
        for u in range(2):
            pa = 152 + 8*(j&1) + 4*u
            for v in range(4):
                acc = 200 + 16*u + 4*v
                a(f"v_mfma_f32_16x16x32_bf16 {V(acc)}, {V(pa)}, {V(168+16*(j&1)+4*v)}, {V(acc)}")
            a(f"v_mfma_f32_16x16x32_bf16 {V(232+4*u)}, {V(pa)}, {V(248)}, {V(232+4*u)}")
    a("s_cmp_eq_u32 s89, 1")
    a("s_cbranch_scc1 L_A_pub")
    a("s_mov_b32 s89, 1")
    a("s_barrier")
    stamp(4)
    a(f"s_cmp_ge_u32 {S_WAVE}, 4")
    a("s_cbranch_scc1 L_A_nost")
    for e in range(32):
        a(f"s_waitcnt vmcnt({31-e})")
        a(f"ds_write_b128 v252, {V(8+4*e)} offset:{1024*e}")
    a("s_waitcnt lgkmcnt(0)")
    a("s_barrier")
    stamp(5)
    a("s_branch L_A_ld_loop")
    a.label("L_A_nost")
    a("s_barrier")
    stamp(5)
    a("s_branch L_A_qk_loop")
    a.label("L_A_pub")
    a(f"ds_read_b128 {V(184)}, v2 offset:128"); a(f"ds_read_b128 {V(188)}, v2 offset:192")
    a("v_lshlrev_b32 v4, 20, v5"); a("v_lshl_add_u32 v4, v6, 4, v4")
    a(f"s_lshr_b32 s80, {S_WAVE}, 1"); a("s_lshl_b32 s80, s80, 16"); a(f"s_and_b32 s81, {S_IDX}, 7"); a("s_lshl_b32 s81, s81, 13"); a("s_add_u32 s80, s80, s81")
    a(f"s_lshr_b32 s81, {S_IDX}, 3"); a("s_lshl_b32 s81, s81, 9"); a("s_add_u32 s80, s80, s81"); a(f"s_and_b32 s81, {S_WAVE}, 1"); a("s_lshl_b32 s81, s81, 8")
    a("s_add_u32 s80, s80, s81"); a(f"s_add_u32 s80, s80, {PART}")
    for k in range(8): a(f"v_mov_b32 v{11+4*k}, {S_TAG}")
    for k in range(8): a(f"v_rcp_f32 v{176+k}, v{232+k}")
    for k in range(8): a(f"v_log_f32 v{10+4*k}, v{232+k}")
    a("s_waitcnt lgkmcnt(0)")
    for u in range(2):
        for v in range(4):
            acc = 200 + 16*u + 4*v
            a(f"v_pk_mul_f32 {V(acc,2)}, {V(acc,2)}, {V(176+4*u,2)}"); a(f"v_pk_mul_f32 {V(acc+2,2)}, {V(acc+2,2)}, {V(178+4*u,2)}")
        for r in range(4):
            k = 4*u + r; b = 200 + 16*u + r
            a(f"v_cvt_pk_bf16_f32 v{8+4*k}, v{b}, v{b+4}"); a(f"v_cvt_pk_bf16_f32 v{9+4*k}, v{b+8}, v{b+12}")
            a(f"v_add_f32 v{10+4*k}, v{10+4*k}, v{184+k}")
            a(f"buffer_store_dwordx4 {V(8+4*k)}, v4, {WS}, s80 offen sc1")
            if k < 7: a(f"s_add_u32 s80, s80, {(13 if r == 3 else 1) * 262144}")
    stamp(7)
    a(f"s_lshl_b32 s80, {S_IDX}, 16"); a(f"s_lshl_b32 s81, {S_WAVE}, 13"); a("s_add_u32 s80, s80, s81"); a(f"s_add_u32 s80, s80, {PART}"); a("s_add_u32 s81, s80, 4096")
    a("v_and_b32 v2, 31, v1"); a("v_lshlrev_b32 v2, 3, v2"); a("v_lshrrev_b32 v3, 5, v1"); a("v_lshl_add_u32 v2, v3, 2, v2")
    a(f"s_mul_i32 s82, {S_WAVE}, 288"); a("v_add_u32 v240, s82, v2")
    a("v_and_b32 v2, 7, v1"); a("v_mul_u32_u24 v3, 288, v2"); a("v_lshl_add_u32 v3, v5, 3, v3"); a(f"s_lshl_b32 s82, {S_WAVE}, 5"); a("v_add_u32 v241, s82, v3")
    a("v_lshlrev_b32 v3, 7, v5"); a("v_lshl_add_u32 v3, v2, 4, v3"); a(f"s_lshl_b32 s82, {S_WAVE}, 12"); a(f"s_add_u32 s82, s82, {LA_R4}"); a("v_add_u32 v242, s82, v3")
    a("v_lshlrev_b32 v243, 4, v0"); a(f"v_add_u32 v243, {LA_R4}, v243")
    a("v_lshrrev_b32 v3, 3, v0"); a("v_lshlrev_b32 v3, 9, v3"); a("v_lshl_add_u32 v244, v2, 4, v3")
    a("s_waitcnt vmcnt(0)")
    perm16(136, 40)
    perm16(8, 56)
    a("s_barrier")
    stamp(8)
    gather([f"buffer_load_dwordx4 {V(72+4*e)}, v7, {WS}, s{80+(e>>2)} offen offset:{1024*(e&3)} sc1" for e in range(8)], [75+4*e for e in range(8)])
    stamp(9)
    a("v_max3_f32 v2, v74, v78, v82"); a("v_max3_f32 v2, v2, v86, v90"); a("v_max3_f32 v2, v2, v94, v98"); a("v_max_f32 v2, v2, v102")
    a("v_mov_b32 v3, v2"); a("v_permlane32_swap_b32 v2, v3"); a("v_max_f32 v2, v2, v3")
    for e in range(8): a(f"v_sub_f32 v{74+4*e}, v{74+4*e}, v2")
    for e in range(8): a(f"v_exp_f32 v{74+4*e}, v{74+4*e}")
    for e in range(8):
        g = 72 + 4*e
        a(f"v_lshlrev_b32 v104, 16, v{g}"); a(f"v_and_b32 v105, 0xffff0000, v{g}"); a(f"v_lshlrev_b32 v106, 16, v{g+1}"); a(f"v_and_b32 v107, 0xffff0000, v{g+1}")
        if e == 0:
            a(f"v_pk_mul_f32 v[108:109], v[104:105], {V(g+2,2)} op_sel_hi:[1,0]"); a(f"v_pk_mul_f32 v[110:111], v[106:107], {V(g+2,2)} op_sel_hi:[1,0]")
        else:
            a(f"v_pk_fma_f32 v[108:109], v[104:105], {V(g+2,2)}, v[108:109] op_sel_hi:[1,0,1]"); a(f"v_pk_fma_f32 v[110:111], v[106:107], {V(g+2,2)}, v[110:111] op_sel_hi:[1,0,1]")
            a(f"v_add_f32 v74, v74, v{g+2}")
    a("v_mov_b32 v3, v74"); a("v_permlane32_swap_b32 v74, v3"); a("v_add_f32 v74, v74, v3"); a("v_rcp_f32 v74, v74")
    a("v_permlane32_swap_b32 v108, v110"); a("v_permlane32_swap_b32 v109, v111")
    a("v_add_f32 v108, v108, v110"); a("v_add_f32 v109, v109, v111")
    a("v_mul_f32 v108, v108, v74"); a("v_mul_f32 v109, v109, v74")
    a("v_cvt_pk_bf16_f32 v108, v108, v109")
    a(f"ds_write_b32 v240, v108 offset:{LA_ACT}")
    a("s_waitcnt lgkmcnt(0)")
    a("s_barrier")
    a(f"ds_read_b64 v[76:77], v241 offset:{LA_ACT}")
    a(f"s_lshl_b32 s80, {S_H}, 14"); a(f"s_add_u32 s80, s80, {CTX}"); a(f"s_lshl_b32 s81, {S_Q}, 7"); a("s_add_u32 s81, s81, s80")
    a(f"v_mov_b32 v71, {S_TAG}")
    a("s_waitcnt lgkmcnt(0)")
    skip = gemm128(136, 76, 160, LA_R4, 242, [512*i for i in range(8)], 243, 64)
    a(f"buffer_store_dwordx4 {V(68)}, v244, {WS}, s81 offen sc1")
    a.label(skip)
    stamp(10)
    a(f"s_lshl_b32 s81, {S_WAVE}, 11"); a("s_add_u32 s80, s80, s81")
    a("v_lshlrev_b32 v2, 9, v5"); a("v_lshl_add_u32 v2, v6, 4, v2")
    gather([f"buffer_load_dwordx4 {V(80+4*z)}, v2, {WS}, s80 offen offset:{256*z} sc1" for z in range(2)], [83, 87])
    stamp(11)
    unpack24(80, 83); unpack24(84, 87)
    a("v_pk_add_f32 v[80:81], v[80:81], v[84:85]"); a("v_pk_add_f32 v[82:83], v[82:83], v[86:87]")
    for k in range(4): a(f"v_add_f32_dpp v{72+k}, v{80+k}, v{80+k} row_ror:8 {DPPM}")
    a("v_cvt_pk_bf16_f32 v76, v72, v73"); a("v_cvt_pk_bf16_f32 v77, v74, v75")
    a(f"s_mov_b32 s88, {S_H}")

    a.label("L_S5")
    LR5 = 65536
    a("v_and_b32 v2, 7, v1"); a("v_lshlrev_b32 v3, 9, v5"); a("v_lshl_add_u32 v3, v2, 6, v3")
    a(f"s_lshl_b32 s82, {S_WAVE}, 12"); a(f"s_add_u32 s82, s82, {LR5}"); a("v_add_u32 v242, s82, v3")
    a("v_lshlrev_b32 v243, 4, v0"); a(f"v_add_u32 v243, {LR5}, v243")
    a("v_bfe_u32 v2, v0, 2, 3"); a("v_lshlrev_b32 v2, 15, v2"); a("v_bfe_u32 v3, v0, 5, 2"); a("v_lshl_add_u32 v2, v3, 13, v2")
    a("v_bfe_u32 v3, v0, 7, 1"); a("v_lshl_add_u32 v2, v3, 12, v2"); a("v_and_b32 v3, 3, v0"); a("v_lshl_add_u32 v244, v3, 4, v2")
    a(f"s_lshl_b32 s80, {S_Q}, 18"); a("s_lshl_b32 s81, s88, 6"); a("s_add_u32 s80, s80, s81"); a(f"s_add_u32 s80, s80, {FIN}")
    a(f"v_mov_b32 v71, {S_TAG}")
    skip = gemm128(8, 76, 160, LR5, 242, [2048*(i>>2) + 16*(i&3) for i in range(8)], 243, 64)
    a(f"buffer_store_dwordx4 {V(68)}, v244, {WS}, s80 offen sc1")
    a.label(skip)
    stamp(12)
    a(f"s_cmp_lg_u32 {S_WAVE}, 7")
    a("s_cbranch_scc1 L_fin")
    a(f"s_lshl_b32 s80, {S_W}, 12"); a(f"s_add_u32 s80, s80, {FIN}")
    a(f"s_bfe_u32 s81, {S_W}, 0x30003"); a("s_lshl_b32 s81, s81, 10"); a(f"s_lshr_b32 s82, {S_W}, 6"); a("s_lshl_b32 s82, s82, 8"); a("s_add_u32 s81, s81, s82")
    a(f"s_bfe_u32 s82, {S_W}, 0x20001"); a("s_lshl_b32 s82, s82, 6"); a("s_add_u32 s81, s81, s82"); a(f"s_and_b32 s82, {S_W}, 1"); a("s_lshl3_add_u32 s81, s82, s81")
    a("v_and_b32 v3, 3, v1"); a("v_lshlrev_b32 v3, 1, v3"); a("v_lshl_add_u32 v4, v5, 4, v3")
    a(f"v_sub_f32 v2, 1.0, {S_GATE}")
    gather([f"buffer_load_dwordx4 {V(80+4*e)}, v7, {WS}, s80 offen offset:{1024*e} sc1" for e in range(4)], [83+4*e for e in range(4)])
    stamp(13)
    for e in range(4): unpack24(80+4*e, 83+4*e)
    a("v_pk_add_f32 v[80:81], v[80:81], v[84:85]"); a("v_pk_add_f32 v[82:83], v[82:83], v[86:87]")
    a("v_pk_add_f32 v[88:89], v[88:89], v[92:93]"); a("v_pk_add_f32 v[90:91], v[90:91], v[94:95]")
    for k in range(4): a(f"v_mul_f32 v{88+k}, v{88+k}, v2")
    for k in range(4): a(f"v_fmac_f32 v{88+k}, {S_GATE}, v{80+k}")
    a("v_permlane32_swap_b32 v88, v90"); a("v_permlane32_swap_b32 v89, v91")
    a("v_add_f32 v88, v88, v90"); a("v_add_f32 v89, v89, v91")
    a("v_permlane16_swap_b32 v88, v89"); a("v_add_f32 v88, v88, v89")
    a(f"v_add_f32_dpp v88, v88, v88 row_ror:4 {DPPM}"); a(f"v_add_f32_dpp v88, v88, v88 row_ror:8 {DPPM}")
    a("v_cvt_pk_bf16_f32 v88, v88, v88")
    a("s_mov_b32 exec_lo, 0x000f000f"); a("s_mov_b32 exec_hi, 0x000f000f")
    a(f"buffer_store_short v88, v4, {SO}, s81 offen")
    a(f"s_cmp_lg_u32 {S_W}, 0")
    a("s_cbranch_scc1 L_fin")
    a("s_mov_b64 exec, 1")
    a("v_mov_b32 v2, 0")
    a(f"buffer_store_dword v71, v2, {WS}, 0 offen sc1")
    a.label("L_fin")
    if dev:
        a("s_mov_b64 exec, -1")
        stamp(14)
        a(f"s_lshl_b32 s80, {S_W}, 3"); a(f"s_add_u32 s80, s80, {S_WAVE}"); a("s_lshl_b32 s80, s80, 6"); a(f"s_add_u32 s80, s80, {TS}")
        a("v_lshlrev_b32 v2, 2, v1")
        a("s_mov_b64 exec, 0xffff")
        a(f"buffer_store_dword v255, v2, {WS}, s80 offen")
    a.label("L_end")
    return a

HEAD = """; gated_mix decode: single persistent kernel, 256 workgroups x 512 threads (generated by work/gen.py)
; @launch grid=(256,1,1) block=(512,1,1) lds=163840
.amdgcn_target "amdgcn-amd-amdhsa--gfx950"
.text
.globl {n}_kernel
.p2align 8
.type {n}_kernel,@function
{n}_kernel:
"""
TAIL = """s_endpgm
.section .rodata,"a"
.p2align 6
.amdhsa_kernel {n}_kernel
  .amdhsa_next_free_vgpr 256
  .amdhsa_next_free_sgpr 102
  .amdhsa_accum_offset 256
  .amdhsa_group_segment_fixed_size 0
  .amdhsa_kernarg_size 120
  .amdhsa_user_sgpr_count 2
  .amdhsa_user_sgpr_kernarg_segment_ptr 1
  .amdhsa_system_sgpr_workgroup_id_x 1
.end_amdhsa_kernel
"""
def full(dev=False, opt=None):
    a = gen(dev, opt)
    return HEAD.format(n=NAME) + a.text() + TAIL.format(n=NAME)

if __name__ == "__main__":
    open("dev.s", "w").write(full(True))
    open("rel.s", "w").write(full(False))
    print("ok")
```

```python
import sys, struct, math
sys.path.insert(0, "work")
from asmlib import Asm

NAME = "gated_mix__compressed_kv_cla__sliding_block_cached__decode"
QA, QB, QABS, CTX, OB, TS, FIN, PART, WSEND = 0x10000, 0x30000, 0x80000, 0x100000, 0x180000, 0x1C0000, 0x200000, 0x400000, 0xC00000
SCALE = (128 ** -0.5) * math.log2(math.e)
def f2u(x): return struct.unpack("<I", struct.pack("<f", x))[0]
DPPM = "row_mask:0xf bank_mask:0xf"

S_W, S_WAVE, S_IDX, S_TAG, S_SPIN, S_GATE = "s2", "s3", "s4", "s5", "s6", "s7"
WS, SA, SB, SC, SD, SE, SX, SG, SO = [f"s[{i}:{i+3}]" for i in (8, 12, 16, 20, 24, 28, 32, 36, 40)]
S_LO, S_HI = "s44", "s45"
S_H, S_Q = "s46", "s47"
P = dict(x=48, ckv=50, wqa=52, wuk=54, wuv=56, woa=58, bx=60, kc=62, vc=64, wqb=66, wob=68, gate=70, out=72, dbg=74, ws=76)

def gen(dev=False, opt=None):
    opt = opt or {}
    a = Asm()
    st = [0]
    def stamp(k):
        if not dev: return
        a("s_memrealtime s[100:101]")
        a("s_waitcnt lgkmcnt(0)")
        a(f"v_writelane_b32 v255, s100, {k}")
    def srd(dst, ptr, nbytes):
        b = int(dst[2:].split(":")[0])
        a(f"s_mov_b32 s{b}, s{P[ptr]}"); a(f"s_mov_b32 s{b+1}, s{P[ptr]+1}")
        a(f"s_mov_b32 s{b+2}, {hex(nbytes)}"); a(f"s_mov_b32 s{b+3}, 0x00020000")
    def V(b, n=4): return f"v[{b}:{b+n-1}]"
    def gather(loads, tagregs):
        lp = a.newlabel("L_poll"); dn = a.newlabel("L_got")
        a.label(lp)
        for l in loads: a(l)
        a("s_waitcnt vmcnt(0)")
        for r in tagregs: a(f"v_cmpx_eq_u32 vcc, {S_TAG}, v{r}")
        a("s_cmp_eq_u64 exec, -1")
        a("s_mov_b64 exec, -1")
        a(f"s_cbranch_scc1 {dn}")
        a(f"s_sub_u32 {S_SPIN}, {S_SPIN}, 1")
        a(f"s_cmp_gt_i32 {S_SPIN}, 0")
        a(f"s_cbranch_scc1 {lp}")
        a.label(dn)
    def perm16(dst, src):
        for i in range(8):
            for p in range(2):
                a(f"v_perm_b32 v{dst+2*i+p}, v{src+4*(2*p+1)+(i>>1)}, v{src+4*(2*p)+(i>>1)}, {S_HI if i&1 else S_LO}")
    def gate_load(vd):
        a(f"s_bfe_u32 s78, {S_W}, 0x30003"); a("s_lshl_b32 s78, s78, 10")
        a(f"v_lshlrev_b32 v2, 4, v1")
        a(f"buffer_load_dwordx4 {V(vd)}, v2, {SX}, s78 offen")
        a(f"buffer_load_dwordx4 {V(vd+4)}, v2, {SG}, 0 offen")
    def gate_calc(vd):
        a("v_mov_b32 v2, 0")
        for q in range(4):
            a(f"v_lshlrev_b32 v3, 16, v{vd+q}"); a(f"v_lshlrev_b32 v4, 16, v{vd+4+q}")
            a(f"v_fmac_f32 v2, v3, v4")
            a(f"v_and_b32 v3, 0xffff0000, v{vd+q}"); a(f"v_and_b32 v4, 0xffff0000, v{vd+4+q}")
            a(f"v_fmac_f32 v2, v3, v4")
        for d in (1, 2, 4, 8):
            a(f"v_add_f32_dpp v2, v2, v2 row_ror:{d} {DPPM}")
        a("v_mov_b32 v3, v2"); a("v_permlane16_swap_b32 v2, v3"); a("v_add_f32 v2, v2, v3")
        a("v_mov_b32 v3, v2"); a("v_permlane32_swap_b32 v2, v3"); a("v_add_f32 v2, v2, v3")
        a(f"v_mul_f32 v2, {hex(f2u(-math.log2(math.e)))}, v2")
        a("v_exp_f32 v2, v2"); a("v_add_f32 v2, 1.0, v2"); a("v_rcp_f32 v2, v2")
        a(f"v_readfirstlane_b32 {S_GATE}, v2")
    def gemm128(wop, act, acc, ldsbase, vlw, woffs, vrd, rd):
        for i in range(8):
            a(f"v_mfma_f32_16x16x16_bf16 {V(acc+4*i)}, {V(wop+2*i,2)}, {V(act,2)}, 0")
        a("s_mov_b64 exec, s[96:97]")
        for i in range(8):
            a(f"ds_write_b128 v{vlw}, {V(acc+4*i)} offset:{woffs[i]}")
        a("s_mov_b64 exec, -1")
        a("s_waitcnt lgkmcnt(0)")
        a("s_barrier")
        skip = a.newlabel("L_nored")
        a(f"s_cmp_ge_u32 {S_WAVE}, 4")
        a(f"s_cbranch_scc1 {skip}")
        for s in range(8):
            a(f"ds_read_b128 {V(acc+4*s)}, v{vrd} offset:{s*4096}")
        for s in range(1, 8):
            a(f"s_waitcnt lgkmcnt({7-s})")
            src = acc if s == 1 else rd
            a(f"v_pk_add_f32 {V(rd,2)}, {V(src,2)}, {V(acc+4*s,2)}")
            a(f"v_pk_add_f32 {V(rd+2,2)}, {V(src+2,2)}, {V(acc+4*s+2,2)}")
        for k in range(3):
            a(f"v_perm_b32 v{rd+4+k}, v{rd+k}, v{rd+3}, s{92+k}")
        return skip
    def unpack24(g, t):
        a(f"v_perm_b32 v{t}, v{g+1}, v{g}, s90")
        a(f"v_perm_b32 v{t}, v{g+2}, v{t}, s91")

    a(f"s_cmp_ge_u32 {S_W}, 256")
    a("s_cbranch_scc1 L_end")
    a("s_load_dwordx16 s[48:63], s[0:1], 0")
    a("s_load_dwordx8 s[64:71], s[0:1], 64")
    a("s_load_dwordx4 s[72:75], s[0:1], 96")
    a("s_load_dwordx2 s[76:77], s[0:1], 112")
    a("v_lshrrev_b32 v2, 6, v0")
    a("v_and_b32 v1, 63, v0")
    a(f"v_readfirstlane_b32 {S_WAVE}, v2")
    a(f"s_and_b32 s78, {S_W}, 7"); a(f"s_lshr_b32 s79, {S_W}, 4"); a(f"s_lshl3_add_u32 {S_IDX}, s79, s78")
    a(f"s_lshr_b32 {S_H}, {S_IDX}, 2"); a(f"s_and_b32 {S_Q}, {S_IDX}, 3")
    a(f"s_mov_b32 {S_LO}, 0x05040100"); a(f"s_mov_b32 {S_HI}, 0x07060302")
    a(f"s_mov_b32 {S_SPIN}, 20000"); a(f"s_mov_b32 {S_GATE}, 0")
    a("s_mov_b32 s90, 0x0c04000c"); a("s_mov_b32 s91, 0x0402010c")
    a("s_mov_b32 s92, 0x07060501"); a("s_mov_b32 s93, 0x07060502"); a("s_mov_b32 s94, 0x07060503")
    a("s_mov_b32 s96, 0x00ff00ff"); a("s_mov_b32 s97, 0x00ff00ff")
    a("v_lshrrev_b32 v5, 4, v1")
    a("v_and_b32 v6, 15, v1")
    a("v_lshlrev_b32 v7, 4, v1")
    if dev:
        a("v_mov_b32 v255, 0")
        a("s_memrealtime s[100:101]"); a("s_waitcnt lgkmcnt(0)"); a("s_not_b32 s100, s100"); a("v_writelane_b32 v255, s100, 15")
    a(f"s_bitcmp1_b32 {S_W}, 3")
    a("s_waitcnt lgkmcnt(0)")
    a(f"s_load_dword {S_TAG}, s[76:77], 0")
    srd(WS, "ws", WSEND); srd(SX, "x", 8192); srd(SG, "gate", 1024); srd(SO, "out", 8192)
    a("s_cbranch_scc0 L_A")

    a.c("==== B role")
    LB_S1, LB_QA, LB_QB, LB_ML, LB_LSE, LB_O, LB_R = 0, 40960, 43520, 44544, 44800, 49152, 65536
    a(f"s_cmp_lt_u32 {S_IDX}, 64")
    a(f"s_cselect_b32 s12, s{P['wqa']}, s{P['wqb']}"); a(f"s_cselect_b32 s13, s{P['wqa']+1}, s{P['wqb']+1}")
    a("s_mov_b32 s14, 0x400000"); a("s_mov_b32 s15, 0x00020000")
    a(f"s_and_b32 s78, {S_IDX}, 63"); a("s_lshl_b32 s79, s78, 7")
    a(f"s_lshl_b32 s80, {S_WAVE}, 19"); a("s_add_u32 s80, s80, s79")
    a("v_lshrrev_b32 v2, 3, v1"); a("v_lshlrev_b32 v2, 16, v2"); a("v_and_b32 v3, 7, v1"); a("v_lshl_add_u32 v2, v3, 4, v2")
    for e in range(8):
        a(f"buffer_load_dwordx4 {V(8+4*e)}, v2, {SA}, s80 offen nt")
        if e < 7: a("s_add_u32 s80, s80, 8192")
    a("v_lshlrev_b32 v4, 10, v3"); a("v_lshrrev_b32 v2, 3, v1"); a("v_lshl_add_u32 v4, v2, 4, v4")
    a(f"s_lshl_b32 s81, {S_WAVE}, 7")
    a(f"buffer_load_dwordx4 {V(40)}, v4, {SX}, s81 offen")
    srd(SB, "wuk", 0x400000)
    a(f"s_lshl_b32 s82, {S_Q}, 20"); a(f"s_lshl_b32 s83, {S_WAVE}, 17"); a("s_add_u32 s82, s82, s83")
    a(f"s_lshl_b32 s83, {S_H}, 8"); a("s_add_u32 s82, s82, s83")
    a("v_lshlrev_b32 v2, 13, v6"); a("v_lshl_add_u32 v2, v5, 4, v2")
    for s in range(4):
        a(f"buffer_load_dwordx4 {V(44+4*s)}, v2, {SB}, s82 offen offset:{64*s} nt")
    srd(SC, "wob", 0x400000); srd(SD, "kc", 0x4000000); srd(SE, "vc", 0x4000000)
    stamp(0)
    a("v_bfe_u32 v2, v1, 3, 1"); a("v_mul_u32_u24 v2, 2560, v2"); a("v_and_b32 v4, 1, v5"); a("v_lshl_add_u32 v2, v4, 7, v2")
    a("v_lshl_add_u32 v2, v3, 4, v2"); a(f"s_mul_i32 s83, {S_WAVE}, 5120"); a("v_add_u32 v128, s83, v2")
    a("v_and_b32 v2, 3, v0"); a("v_bfe_u32 v3, v0, 7, 1"); a("v_lshl_add_u32 v2, v3, 2, v2"); a("v_mul_u32_u24 v2, 320, v2")
    a("v_lshrrev_b32 v4, 8, v0"); a("v_lshl_add_u32 v2, v4, 7, v2"); a("v_and_b32 v129, 0x7c, v0"); a("v_add_u32 v129, v129, v2")
    a("v_bfe_u32 v2, v0, 4, 3"); a("v_lshl_add_u32 v2, v2, 1, v3")
    a("v_bfe_u32 v3, v0, 2, 2"); a("v_lshl_add_u32 v3, v4, 2, v3")
    a(f"s_cmp_lt_u32 {S_IDX}, 64")
    a("s_cselect_b32 s83, 128, 16"); a("s_cselect_b32 s84, 16, 16384"); a(f"s_cselect_b32 s85, {QA>>16}, {QB>>16}"); a("s_lshl_b32 s85, s85, 16")
    a("s_lshl_b32 s86, s83, 4"); a("s_mul_i32 s86, s86, s78"); a("s_add_u32 s85, s85, s86")
    a("v_mul_u32_u24 v2, s83, v2"); a("v_mad_u32_u24 v130, v3, s84, v2")
    a("s_waitcnt vmcnt(4)")
    stamp(1)
    for i in range(8):
        for p in range(4):
            a(f"v_perm_b32 v{64+4*i+p}, v{8+4*(2*p+1)+(i>>1)}, v{8+4*(2*p)+(i>>1)}, {S_HI if i&1 else S_LO}")
        if i >= 1: a(f"v_mfma_f32_16x16x32_bf16 {V(96+4*(i-1))}, {V(40)}, {V(64+4*(i-1))}, 0")
    a(f"v_mfma_f32_16x16x32_bf16 {V(96+28)}, {V(40)}, {V(64+28)}, 0")
    a("s_mov_b32 exec_lo, 0x00ff00ff"); a("s_mov_b32 exec_hi, 0xff00ff00")
    for i in range(8):
        a(f"ds_write_b128 v128, {V(96+4*i)} offset:{LB_S1+320*i}")
    a("s_mov_b64 exec, -1")
    a("s_waitcnt lgkmcnt(0)")
    a(f"s_add_u32 {S_TAG}, {S_TAG}, 0x9e3779b9")
    a("s_barrier")
    for s in range(8):
        a(f"ds_read2st64_b32 {V(64+2*s,2)}, v129 offset0:{20*s} offset1:{20*s+10}")
    a(f"v_mov_b32 v135, {S_TAG}")
    for s in range(1, 8):
        a(f"s_waitcnt lgkmcnt({7-s})")
        a(f"v_pk_add_f32 v[64:65], v[64:65], {V(64+2*s,2)}")
    a("v_add_f32 v64, v64, v65")
    a(f"v_mov_b32_dpp v65, v64 quad_perm:[1,1,3,3] {DPPM}")
    a("v_cvt_pk_bf16_f32 v132, v64, v65")
    a(f"v_mov_b32_dpp v133, v132 quad_perm:[2,2,2,2] {DPPM}")
    a("s_mov_b32 exec_lo, 0x11111111"); a("s_mov_b32 exec_hi, 0x11111111")
    a(f"buffer_store_dwordx4 {V(132)}, v130, {WS}, s85 offen sc1")
    a("s_mov_b64 exec, -1")
    stamp(2)
    a(f"s_lshr_b32 s78, {S_IDX}, 4"); a(f"s_bfe_u32 s79, {S_IDX}, 0x30001")
    a(f"s_cmp_lt_u32 {S_WAVE}, 4")
    a("s_cbranch_scc0 L_B_qb")
    a(f"s_lshl_b32 s80, {S_H}, 12"); a(f"s_lshl_b32 s81, {S_WAVE}, 10"); a("s_add_u32 s80, s80, s81"); a(f"s_add_u32 s80, s80, {QA}")
    a("v_and_b32 v2, 7, v1"); a("v_mul_u32_u24 v2, 272, v2"); a("v_and_b32 v3, 0x38, v1"); a("v_add_u32 v2, v2, v3")
    a(f"s_lshl_b32 s81, {S_WAVE}, 6"); a(f"s_add_u32 s81, s81, {LB_QA}")
    a("s_branch L_B_qg")
    a.label("L_B_qb")
    a("s_lshl_b32 s80, s78, 14"); a("s_lshl_b32 s81, s79, 11"); a("s_add_u32 s80, s80, s81")
    a(f"s_and_b32 s81, {S_WAVE}, 1"); a("s_lshl_b32 s82, s81, 10"); a("s_add_u32 s80, s80, s82"); a(f"s_add_u32 s80, s80, {QB}")
    a("v_lshlrev_b32 v2, 3, v1")
    a("s_lshl_b32 s81, s81, 9"); a(f"s_add_u32 s81, s81, {LB_QB}")
    a.label("L_B_qg")
    a("v_add_u32 v2, s81, v2")
    gather([f"buffer_load_dwordx4 {V(64)}, v7, {WS}, s80 offen sc1"], [67])
    a("ds_write_b64 v2, v[64:65]")
    a("v_and_b32 v2, 7, v1"); a("v_mul_u32_u24 v2, 272, v2"); a("v_lshl_add_u32 v2, v5, 4, v2")
    a("v_bfe_u32 v3, v1, 2, 2"); a("v_lshlrev_b32 v3, 8, v3"); a("v_lshl_add_u32 v3, v5, 6, v3")
    a("v_and_b32 v4, 3, v1"); a("v_lshl_add_u32 v3, v4, 4, v3")
    a("s_waitcnt lgkmcnt(0)")
    a("s_barrier")
    stamp(3)
    for s in range(4):
        a(f"ds_read_b128 {V(64+4*s)}, v2 offset:{LB_QA+64*s}")
    a(f"ds_read_b128 {V(152)}, v3 offset:{LB_QB}")
    a("v_and_b32 v2, 7, v1"); a("v_lshlrev_b32 v2, 16, v2"); a("v_lshrrev_b32 v4, 5, v1"); a("v_lshl_add_u32 v2, v4, 11, v2")
    a("v_and_b32 v4, 1, v5"); a("v_lshl_add_u32 v2, v4, 4, v2")
    a(f"s_lshr_b32 s80, {S_H}, 4"); a("s_lshl_b32 s80, s80, 15"); a(f"s_lshl_b32 s81, {S_WAVE}, 12"); a("s_add_u32 s80, s80, s81")
    a(f"s_lshl_b32 s81, {S_Q}, 9"); a("s_add_u32 s80, s80, s81"); a(f"s_and_b32 s81, {S_H}, 15"); a("s_lshl_b32 s81, s81, 5")
    a("s_add_u32 s80, s80, s81"); a(f"s_add_u32 s80, s80, {QABS}")
    for s in range(4):
        a(f"s_waitcnt lgkmcnt({4-s})")
        a(f"v_mfma_f32_16x16x32_bf16 {V(96)}, {V(44+4*s)}, {V(64+4*s)}, {'0' if s==0 else V(96)}")
    a(f"s_mov_b32 s81, {hex(f2u(SCALE))}")
    for r in range(4): a(f"v_mul_f32 v{96+r}, s81, v{96+r}")
    a("v_cvt_pk_bf16_f32 v132, v96, v97"); a("v_cvt_pk_bf16_f32 v133, v98, v99")
    a("s_mov_b64 exec, s[96:97]")
    a(f"buffer_store_dwordx4 {V(132)}, v2, {WS}, s80 offen sc1")
    a("s_mov_b64 exec, -1")
    stamp(4)
    a(f"s_cmp_lg_u32 {S_WAVE}, 7")
    a("s_cbranch_scc1 L_B_ng")
    gate_load(192)
    a.label("L_B_ng")
    a(f"s_lshr_b32 s80, {S_IDX}, 1"); a("s_lshl_b32 s80, s80, 20"); a(f"s_and_b32 s81, {S_IDX}, 1"); a("s_lshl_b32 s81, s81, 17")
    a("s_add_u32 s80, s80, s81"); a(f"s_lshl_b32 s81, {S_WAVE}, 14"); a("s_add_u32 s80, s80, s81"); a(f"s_add_u32 s80, s80, {3072*256}")
    for k in range(1, 4): a(f"s_add_u32 s{80+k}, s80, {4096*k}")
    for e in range(16):
        a(f"buffer_load_dwordx4 {V(8+4*e)}, v3, {SD}, s{80+(e>>2)} offen offset:{1024*(e&3)} nt")
    for e in range(16):
        a(f"buffer_load_dwordx4 {V(72+4*e)}, v7, {SE}, s{80+(e>>2)} offen offset:{1024*(e&3)} nt")
    a(f"s_lshl_b32 s84, {S_H}, 17"); a(f"s_lshl_b32 s85, {S_WAVE}, 14"); a("s_add_u32 s84, s84, s85"); a(f"s_lshl_b32 s85, {S_Q}, 8"); a("s_add_u32 s84, s84, s85")
    a("v_lshlrev_b32 v2, 12, v5"); a("v_lshl_add_u32 v2, v6, 4, v2")
    for e in range(4):
        a(f"buffer_load_dwordx4 {V(136+4*e)}, v2, {SC}, s84 offen offset:{1024*e} nt")
    a("s_waitcnt lgkmcnt(0)")
    def s_from(e):
        d = 160 + 4*(e & 3)
        a(f"v_mov_b32_dpp v{200+e}, v{d} quad_perm:[0,0,0,0] {DPPM}")
        for r in range(1, 4):
            a(f"v_add_f32_dpp v{200+e}, v{d+r}, v{200+e} quad_perm:[{r},{r},{r},{r}] {DPPM}")
    for e in range(16):
        a(f"s_waitcnt vmcnt({35-e})")
        a(f"v_mfma_f32_16x16x32_bf16 {V(160+4*(e&3))}, {V(8+4*e)}, {V(152)}, 0")
        if e >= 2: s_from(e-2)
    s_from(14); s_from(15)
    stamp(5)
    a("v_max3_f32 v2, v200, v201, v202")
    for e in range(3, 15, 2): a(f"v_max3_f32 v2, v2, v{200+e}, v{201+e}")
    a("v_max_f32 v2, v2, v215")
    a("v_mov_b32 v3, v2"); a("v_permlane16_swap_b32 v2, v3"); a("v_max_f32 v2, v2, v3")
    a("v_mov_b32 v3, v2"); a("v_permlane32_swap_b32 v2, v3"); a("v_max_f32 v2, v2, v3")
    a(f"s_mov_b32 s81, {hex(f2u(SCALE))}")
    a("v_mul_f32 v216, s81, v2")
    for e in range(16): a(f"v_fma_f32 v{200+e}, v{200+e}, s81, -v216")
    for e in range(16): a(f"v_exp_f32 v{200+e}, v{200+e}")
    a("v_add_f32 v217, v200, v201")
    for e in range(2, 16): a(f"v_add_f32 v217, v217, v{200+e}")
    a("v_mov_b32 v3, v217"); a("v_permlane16_swap_b32 v217, v3"); a("v_add_f32 v217, v217, v3")
    a("v_mov_b32 v3, v217"); a("v_permlane32_swap_b32 v217, v3"); a("v_add_f32 v217, v217, v3")
    a("v_bfe_u32 v4, v1, 2, 2"); a("v_lshlrev_b32 v2, 6, v4")
    a(f"s_lshl_b32 s82, {S_WAVE}, 3"); a("v_add_u32 v3, s82, v2")
    a(f"ds_write_b64 v3, v[216:217] offset:{LB_ML}")
    a(f"s_cmp_lg_u32 {S_WAVE}, 7")
    a("s_cbranch_scc1 L_B_ng2")
    a("v_mov_b32 v218, v2")
    gate_calc(192)
    a("v_mov_b32 v2, v218"); a("v_bfe_u32 v4, v1, 2, 2")
    a.label("L_B_ng2")
    a("s_waitcnt lgkmcnt(0)")
    a("s_barrier")
    for k in range(4): a(f"ds_read_b128 {V(160+4*k)}, v2 offset:{LB_ML+16*k}")
    a("s_waitcnt lgkmcnt(0)")
    a("v_max3_f32 v218, v160, v162, v164"); a("v_max3_f32 v218, v218, v166, v168"); a("v_max3_f32 v218, v218, v170, v172"); a("v_max_f32 v218, v218, v174")
    for k in range(8): a(f"v_sub_f32 v{160+2*k}, v{160+2*k}, v218")
    for k in range(8): a(f"v_exp_f32 v{160+2*k}, v{160+2*k}")
    a("v_mul_f32 v219, v160, v161")
    for k in range(1, 8): a(f"v_fmac_f32 v219, v{160+2*k}, v{161+2*k}")
    a("v_sub_f32 v216, v216, v218"); a("v_exp_f32 v216, v216"); a("v_rcp_f32 v217, v219"); a("v_log_f32 v219, v219")
    a("v_mul_f32 v216, v216, v217"); a("v_add_f32 v219, v219, v218")
    a("v_lshlrev_b32 v4, 2, v4")
    a(f"ds_write_b32 v4, v219 offset:{LB_LSE}")
    for e in range(16): a(f"v_mul_f32 v{200+e}, v{200+e}, v216")
    for k in range(8): a(f"v_cvt_pk_bf16_f32 v{220+k}, v{200+2*k}, v{201+2*k}")
    a(f"s_lshl_b32 s82, {S_WAVE}, 11"); a(f"s_add_u32 s82, s82, {LB_O}"); a("v_add_u32 v228, s82, v7")
    a("v_lshlrev_b32 v229, 4, v0")
    a("v_lshlrev_b32 v230, 13, v5"); a("v_lshl_add_u32 v230, v6, 9, v230")
    a("s_lshl_b32 s82, s79, 15"); a(f"s_lshl_b32 s83, {S_WAVE}, 8"); a("s_add_u32 s82, s82, s83")
    a(f"s_and_b32 s83, {S_IDX}, 1"); a("s_lshl_b32 s83, s83, 7"); a("s_add_u32 s82, s82, s83")
    a("s_lshl_b32 s83, s78, 4"); a("s_add_u32 s82, s82, s83"); a(f"s_add_u32 s82, s82, {OB}")
    a("v_lshlrev_b32 v231, 2, v5")
    stamp(6)
    for z in range(2):
        for p in range(4):
            e = 8*z + 2*p
            a(f"s_waitcnt vmcnt({4+14-e})")
            for i in range(8):
                a(f"v_perm_b32 v{8+32*z+4*i+p}, v{72+4*(e+1)+(i>>1)}, v{72+4*e+(i>>1)}, {S_HI if i&1 else S_LO}")
        for i in range(8):
            a(f"v_mfma_f32_16x16x32_bf16 {V(160+4*i)}, {V(220+4*z)}, {V(8+32*z+4*i)}, {'0' if z==0 else V(160+4*i)}")
    for x in range(2):
        for k in range(1, 4): a(f"v_mov_b32 v{160+16*x+k}, v{160+16*x+4*k}")
        a(f"ds_write_b128 v228, {V(160+16*x)} offset:{1024*x}")
    a("s_waitcnt lgkmcnt(0)")
    a("s_barrier")
    stamp(7)
    a(f"s_cmp_ge_u32 {S_WAVE}, 2")
    a("s_cbranch_scc1 L_B_s5")
    for s in range(8): a(f"ds_read_b128 {V(160+4*s)}, v229 offset:{LB_O+2048*s}")
    a(f"ds_read_b32 v134, v231 offset:{LB_LSE}")
    for s in range(1, 8):
        a(f"s_waitcnt lgkmcnt({8-s})")
        a(f"v_pk_add_f32 v[160:161], v[160:161], {V(160+4*s,2)}"); a(f"v_pk_add_f32 v[162:163], v[162:163], {V(162+4*s,2)}")
    a("v_cvt_pk_bf16_f32 v132, v160, v161"); a("v_cvt_pk_bf16_f32 v133, v162, v163")
    a(f"v_mov_b32 v135, {S_TAG}")
    a("s_waitcnt lgkmcnt(0)")
    a(f"buffer_store_dwordx4 {V(132)}, v230, {WS}, s82 offen sc1")
    a.label("L_B_s5")
    a("s_waitcnt vmcnt(1)")
    a("s_waitcnt vmcnt(0)")
    perm16(8, 136)
    a(f"s_lshl_b32 s80, {S_H}, 13"); a(f"s_lshl_b32 s81, {S_WAVE}, 10"); a("s_add_u32 s80, s80, s81"); a(f"s_add_u32 s80, s80, {OB}")
    stamp(8)
    gather([f"buffer_load_dwordx4 {V(64)}, v7, {WS}, s80 offen sc1"], [67])
    stamp(9)
    a(f"v_sub_f32_dpp v2, v66, v66 row_ror:8 {DPPM}")
    a("v_exp_f32 v2, v2"); a("v_lshlrev_b32 v68, 16, v64"); a("v_add_f32 v2, 1.0, v2"); a("v_and_b32 v69, 0xffff0000, v64")
    a("v_rcp_f32 v2, v2"); a("v_lshlrev_b32 v70, 16, v65"); a("v_and_b32 v71, 0xffff0000, v65")
    for k in range(4): a(f"v_mul_f32 v{68+k}, v{68+k}, v2")
    for k in range(4): a(f"v_add_f32_dpp v{72+k}, v{68+k}, v{68+k} row_ror:8 {DPPM}")
    a("v_cvt_pk_bf16_f32 v76, v72, v73"); a("v_cvt_pk_bf16_f32 v77, v74, v75")
    a(f"s_add_u32 s88, {S_H}, 32")
    a("s_branch L_S5")

    a.label("L_A")
    a.c("==== A role")
    QR = 131072
    LA_P, LA_MX, LA_AL, LA_M = QR, QR + 8192, QR + 8704, QR + 8832
    LA_ACT, LA_R4 = 0, 8192
    srd(SA, "ckv", 0x2000000)
    a(f"s_cmp_ge_u32 {S_WAVE}, 4")
    a("s_cbranch_scc1 L_A_qk0")
    a(f"s_and_b32 s78, {S_IDX}, 7"); a("s_lshl_b32 s78, s78, 22"); a(f"s_lshr_b32 s79, {S_IDX}, 3"); a("s_lshl_b32 s79, s79, 18")
    a("s_add_u32 s78, s78, s79"); a(f"s_lshl_b32 s79, {S_WAVE}, 15"); a("s_add_u32 s78, s78, s79")
    a("s_mov_b32 m0, s79")
    def fsw(k): return ((k & 7) << 1) | ((k >> 3) & 1)
    for e in range(32):
        if e < 16: a(f"v_xor_b32 v{136+e}, {fsw(e)*16}, v7")
        a(f"buffer_load_dwordx4 v{136+(e&15)}, {SA}, s78 offen offset:{1024*(e&3)} nt lds")
        if (e & 3) == 3:
            a("s_add_u32 s78, s78, 4096")
            if e < 31: a("s_add_u32 m0, m0, 4096")
    a(f"s_add_u32 s78, s78, {131072-32768}")
    for e in range(32):
        a(f"buffer_load_dwordx4 {V(8+4*e)}, v{136+(e&15)}, {SA}, s78 offen offset:{1024*(e&3)} nt")
        if (e & 3) == 3 and e < 31: a("s_add_u32 s78, s78, 4096")
    a("v_add_u32 v252, s79, v7")
    stamp(0)
    a("s_branch L_A_c0")
    a.label("L_A_qk0")
    a(f"s_cmp_lg_u32 {S_WAVE}, 7")
    a("s_cbranch_scc1 L_A_ng")
    gate_load(192)
    a("s_waitcnt vmcnt(0)")
    gate_calc(192)
    a.label("L_A_ng")
    a(f"s_sub_u32 s79, {S_WAVE}, 4"); a("s_lshl_b32 s80, s79, 15")
    a("v_and_b32 v2, 7, v6"); a("v_lshlrev_b32 v2, 1, v2"); a("v_lshrrev_b32 v3, 3, v6"); a("v_or_b32 v2, v2, v3"); a("v_lshlrev_b32 v2, 4, v2")
    a("v_lshlrev_b32 v3, 10, v6"); a("v_lshl_add_u32 v3, v5, 8, v3"); a("v_add_u32 v3, s80, v3")
    for s in range(16): a(f"v_xad_u32 v{136+s}, v2, {s*16}, v3" if s*16 <= 64 else f"v_xor_b32 v{136+s}, {s*16}, v2")
    for s in range(16):
        if s*16 > 64: a(f"v_add_u32 v{136+s}, v{136+s}, v3")
    a("v_mov_b32 v253, 0xff7fffff"); a("v_mov_b32 v254, 0xff7fffff")
    a.label("L_A_c0")
    a("v_lshrrev_b32 v2, 2, v1")
    a("v_and_b32 v3, 7, v2"); a("v_lshlrev_b32 v3, 1, v3"); a("v_lshrrev_b32 v4, 5, v1"); a("v_or_b32 v3, v3, v4")
    a("v_bfe_u32 v4, v1, 1, 1"); a(f"s_lshl_b32 s80, {S_WAVE}, 3"); a("v_add_u32 v4, s80, v4"); a("v_xor_b32 v3, v3, v4")
    a("v_lshlrev_b32 v2, 10, v2"); a("v_and_b32 v4, 1, v1"); a("v_lshl_add_u32 v2, v4, 3, v2")
    for v in range(4):
        a(f"v_xor_b32 v4, {2*v}, v3"); a(f"v_lshl_add_u32 v{240+v}, v4, 4, v2"); a(f"v_add_u32 v{244+v}, 0x10000, v{240+v}")
    for r in range(40): a(f"v_mov_b32 v{200+r}, 0")
    for r in range(4): a(f"v_mov_b32 v{248+r}, 0x3f803f80")
    a("s_waitcnt lgkmcnt(0)")
    a(f"s_add_u32 {S_TAG}, {S_TAG}, 0x9e3779b9")
    srd(SB, "wuv", 0x400000); srd(SC, "woa", 0x400000)
    a("s_mov_b32 s89, 0")
    a(f"s_cmp_ge_u32 {S_WAVE}, 4")
    a("s_cbranch_scc1 L_A_qk1")
    a("s_waitcnt vmcnt(32)")
    stamp(1)
    a("s_barrier")
    a("s_barrier")
    a.label("L_A_ld_loop")
    a("s_barrier")
    a("s_branch L_A_pv")
    a.label("L_A_qk1")
    a(f"s_and_b32 s78, {S_IDX}, 7"); a("s_lshl_b32 s78, s78, 16"); a("s_lshl_b32 s80, s79, 14"); a("s_add_u32 s78, s78, s80"); a(f"s_add_u32 s80, s78, {QABS}")
    for k in range(1, 4): a(f"s_add_u32 s{80+k}, s80, {4096*k}")
    a("v_lshlrev_b32 v2, 3, v1"); a("s_lshl_b32 s84, s79, 13"); a(f"s_add_u32 s84, s84, {QR}"); a("v_add_u32 v2, s84, v2")
    stamp(0)
    gather([f"buffer_load_dwordx4 {V(8+4*e)}, v7, {WS}, s80 offen offset:{1024*e} sc1" for e in range(2)], [11, 15])
    stamp(1)
    gather([f"buffer_load_dwordx4 {V(8+4*e)}, v7, {WS}, s{80+(e>>2)} offen offset:{1024*(e&3)} sc1" for e in range(2, 16)], [11+4*e for e in range(2, 16)])
    for e in range(16): a(f"ds_write_b64 v2, {V(8+4*e,2)} offset:{512*e}")
    a(f"v_add_u32 v3, {QR}, v7")
    a("s_waitcnt lgkmcnt(0)")
    stamp(2)
    a("s_barrier")
    for k in range(32): a(f"ds_read_b128 {V(8+4*k)}, v3 offset:{1024*k}")
    a("s_waitcnt lgkmcnt(0)")
    a("s_barrier")
    stamp(3)
    a.label("L_A_qk_loop")
    def rdA(s):
        for T in range(2): a(f"ds_read_b128 {V(168+8*(s&3)+4*T)}, v{136+s} offset:{16384*T}")
    for s in range(4): rdA(s)
    for s in range(16):
        a(f"s_waitcnt lgkmcnt({min(6, 2*(15-s))})")
        for T in range(2):
            for u in range(2):
                acc = 152 + 8*T + 4*u
                a(f"v_mfma_f32_16x16x32_bf16 {V(acc)}, {V(168+8*(s&3)+4*T)}, {V(8+64*u+4*s)}, {'0' if s==0 else V(acc)}")
        if s + 4 < 16: rdA(s+4)
    a("v_lshrrev_b32 v4, 5, v1"); a("v_lshlrev_b32 v4, 8, v4"); a("v_lshl_add_u32 v4, v6, 4, v4")
    a("s_lshl_b32 s80, s79, 2"); a(f"s_add_u32 s80, s80, {LA_MX}"); a("v_add_u32 v4, s80, v4")
    a(f"v_lshlrev_b32 v168, 4, v6"); a(f"v_add_u32 v168, {LA_MX}, v168")
    for u in range(2):
        b0, b1 = 152+4*u, 160+4*u
        a(f"v_max3_f32 v{2+u}, v{b0}, v{b0+1}, v{b0+2}"); a(f"v_max3_f32 v{2+u}, v{2+u}, v{b0+3}, v{b1}")
        a(f"v_max3_f32 v{2+u}, v{2+u}, v{b1+1}, v{b1+2}"); a(f"v_max_f32 v{2+u}, v{2+u}, v{b1+3}")
    a("v_permlane32_swap_b32 v2, v3"); a("v_max_f32 v2, v2, v3")
    a("v_mov_b32 v3, v2"); a("v_permlane16_swap_b32 v2, v3"); a("v_max_f32 v2, v2, v3")
    a("ds_write_b32 v4, v2")
    a("s_waitcnt lgkmcnt(0)")
    a("s_barrier")
    a(f"ds_read_b128 {V(172)}, v168"); a(f"ds_read_b128 {V(176)}, v168 offset:256")
    a("s_lshl_b32 s80, s79, 11"); a(f"s_add_u32 s80, s80, {LA_P}"); a("v_add_u32 v4, s80, v7")
    a(f"v_lshlrev_b32 v169, 2, v6"); a(f"v_add_u32 v169, {LA_AL}, v169")
    for u in range(2):
        a(f"s_waitcnt lgkmcnt({1-u})")
        a(f"v_max3_f32 v{2+u}, v{172+4*u}, v{173+4*u}, v{174+4*u}"); a(f"v_max3_f32 v{2+u}, v{2+u}, v{175+4*u}, v{253+u}")
        regs = [152+4*u+r for r in range(4)] + [160+4*u+r for r in range(4)]
        for r in regs: a(f"v_sub_f32 v{r}, v{r}, v{2+u}")
        for r in regs: a(f"v_exp_f32 v{r}, v{r}")
        for k in range(4): a(f"v_cvt_pk_bf16_f32 v{180+4*u+k}, v{regs[2*k]}, v{regs[2*k+1]}")
        a(f"ds_write_b128 v4, {V(180+4*u)} offset:{1024*u}")
    for u in range(2):
        a(f"v_sub_f32 v{253+u}, v{253+u}, v{2+u}"); a(f"v_exp_f32 v{253+u}, v{253+u}")
        a(f"ds_write_b32 v169, v{2+u} offset:{128+64*u}")
        a(f"ds_write_b32 v169, v{253+u} offset:{64*u}")
        a(f"v_mov_b32 v{253+u}, v{2+u}")
    a("s_waitcnt lgkmcnt(0)")
    a.label("L_A_pv")
    a("s_barrier")
    a(f"v_add_u32 v3, {LA_P}, v7")
    a(f"v_lshlrev_b32 v2, 4, v5"); a(f"v_add_u32 v2, {LA_AL}, v2")
    def rdPV(j):
        for u in range(2): a(f"ds_read_b128 {V(152+8*(j&1)+4*u)}, v3 offset:{2048*j+1024*u}")
        for v in range(4):
            for T in range(2):
                a(f"ds_read_b64_tr_b16 {V(168+16*(j&1)+4*v+2*T,2)}, v{(240 if j<2 else 244)+v} offset:{32768*(j&1)+16384*T}")
    a(f"ds_read_b128 {V(184)}, v2"); a(f"ds_read_b128 {V(188)}, v2 offset:64")
    rdPV(0)
    a("s_cmp_eq_u32 s89, 0")
    a("s_cbranch_scc1 L_A_now")
    stamp(6)
    a(f"s_lshl_b32 s80, {S_Q}, 7"); a(f"s_lshr_b32 s81, {S_WAVE}, 2"); a("s_lshl_b32 s81, s81, 6"); a("s_add_u32 s80, s80, s81")
    a(f"s_and_b32 s81, {S_WAVE}, 3"); a("s_lshl2_add_u32 s80, s81, s80"); a("s_lshl_b32 s80, s80, 13"); a(f"s_lshl_b32 s81, {S_H}, 8"); a("s_add_u32 s80, s80, s81")
    a("v_lshlrev_b32 v4, 13, v5"); a("v_lshl_add_u32 v4, v6, 4, v4")
    for e in range(4):
        a(f"buffer_load_dwordx4 {V(40+4*e)}, v4, {SB}, s80 offen nt")
        if e < 3: a(f"s_add_u32 s80, s80, {16*8192}")
    a(f"s_lshl_b32 s80, {S_H}, 7"); a(f"s_add_u32 s80, s80, {S_WAVE}"); a("s_lshl_b32 s80, s80, 10"); a(f"s_lshl_b32 s81, {S_Q}, 8"); a("s_add_u32 s80, s80, s81")
    a("v_lshlrev_b32 v4, 15, v5"); a("v_lshl_add_u32 v4, v6, 4, v4")
    for e in range(4):
        a(f"buffer_load_dwordx4 {V(56+4*e)}, v4, {SC}, s80 offen nt")
        if e < 3: a("s_add_u32 s80, s80, 8192")
    a("s_waitcnt lgkmcnt(10)")
    for u in range(2):
        for v in range(5):
            acc = 200 + 16*u + 4*v if v < 4 else 232 + 4*u
            a(f"v_pk_mul_f32 {V(acc,2)}, {V(acc,2)}, {V(184+4*u,2)}"); a(f"v_pk_mul_f32 {V(acc+2,2)}, {V(acc+2,2)}, {V(186+4*u,2)}")
    a.label("L_A_now")
    for j in range(4):
        a("s_waitcnt lgkmcnt(0)")
        if j < 3: rdPV(j+1)
        for u in range(2):
            pa = 152 + 8*(j&1) + 4*u
            for v in range(4):
                acc = 200 + 16*u + 4*v
                a(f"v_mfma_f32_16x16x32_bf16 {V(acc)}, {V(pa)}, {V(168+16*(j&1)+4*v)}, {V(acc)}")
            a(f"v_mfma_f32_16x16x32_bf16 {V(232+4*u)}, {V(pa)}, {V(248)}, {V(232+4*u)}")
    a("s_cmp_eq_u32 s89, 1")
    a("s_cbranch_scc1 L_A_pub")
    a("s_mov_b32 s89, 1")
    a("s_barrier")
    stamp(4)
    a(f"s_cmp_ge_u32 {S_WAVE}, 4")
    a("s_cbranch_scc1 L_A_nost")
    for e in range(32):
        a(f"s_waitcnt vmcnt({31-e})")
        a(f"ds_write_b128 v252, {V(8+4*e)} offset:{1024*e}")
    a("s_waitcnt lgkmcnt(0)")
    a("s_barrier")
    stamp(5)
    a("s_branch L_A_ld_loop")
    a.label("L_A_nost")
    a("s_barrier")
    stamp(5)
    a("s_branch L_A_qk_loop")
    a.label("L_A_pub")
    a(f"ds_read_b128 {V(184)}, v2 offset:128"); a(f"ds_read_b128 {V(188)}, v2 offset:192")
    a("v_lshlrev_b32 v4, 20, v5"); a("v_lshl_add_u32 v4, v6, 4, v4")
    a(f"s_lshr_b32 s80, {S_WAVE}, 1"); a("s_lshl_b32 s80, s80, 16"); a(f"s_and_b32 s81, {S_IDX}, 7"); a("s_lshl_b32 s81, s81, 13"); a("s_add_u32 s80, s80, s81")
    a(f"s_lshr_b32 s81, {S_IDX}, 3"); a("s_lshl_b32 s81, s81, 9"); a("s_add_u32 s80, s80, s81"); a(f"s_and_b32 s81, {S_WAVE}, 1"); a("s_lshl_b32 s81, s81, 8")
    a("s_add_u32 s80, s80, s81"); a(f"s_add_u32 s80, s80, {PART}")
    for k in range(8): a(f"v_mov_b32 v{11+4*k}, {S_TAG}")
    for k in range(8): a(f"v_rcp_f32 v{176+k}, v{232+k}")
    for k in range(8): a(f"v_log_f32 v{10+4*k}, v{232+k}")
    a("s_waitcnt lgkmcnt(0)")
    for u in range(2):
        for v in range(4):
            acc = 200 + 16*u + 4*v
            a(f"v_pk_mul_f32 {V(acc,2)}, {V(acc,2)}, {V(176+4*u,2)}"); a(f"v_pk_mul_f32 {V(acc+2,2)}, {V(acc+2,2)}, {V(178+4*u,2)}")
        for r in range(4):
            k = 4*u + r; b = 200 + 16*u + r
            a(f"v_cvt_pk_bf16_f32 v{8+4*k}, v{b}, v{b+4}"); a(f"v_cvt_pk_bf16_f32 v{9+4*k}, v{b+8}, v{b+12}")
            a(f"v_add_f32 v{10+4*k}, v{10+4*k}, v{184+k}")
            a(f"buffer_store_dwordx4 {V(8+4*k)}, v4, {WS}, s80 offen sc1")
            if k < 7: a(f"s_add_u32 s80, s80, {(13 if r == 3 else 1) * 262144}")
    stamp(7)
    a(f"s_lshl_b32 s80, {S_IDX}, 16"); a(f"s_lshl_b32 s81, {S_WAVE}, 13"); a("s_add_u32 s80, s80, s81"); a(f"s_add_u32 s80, s80, {PART}"); a("s_add_u32 s81, s80, 4096")
    a("v_and_b32 v2, 31, v1"); a("v_lshlrev_b32 v2, 3, v2"); a("v_lshrrev_b32 v3, 5, v1"); a("v_lshl_add_u32 v2, v3, 2, v2")
    a(f"s_mul_i32 s82, {S_WAVE}, 288"); a("v_add_u32 v240, s82, v2")
    a("v_and_b32 v2, 7, v1"); a("v_mul_u32_u24 v3, 288, v2"); a("v_lshl_add_u32 v3, v5, 3, v3"); a(f"s_lshl_b32 s82, {S_WAVE}, 5"); a("v_add_u32 v241, s82, v3")
    a("v_lshlrev_b32 v3, 7, v5"); a("v_lshl_add_u32 v3, v2, 4, v3"); a(f"s_lshl_b32 s82, {S_WAVE}, 12"); a(f"s_add_u32 s82, s82, {LA_R4}"); a("v_add_u32 v242, s82, v3")
    a("v_lshlrev_b32 v243, 4, v0"); a(f"v_add_u32 v243, {LA_R4}, v243")
    a("v_lshrrev_b32 v3, 3, v0"); a("v_lshlrev_b32 v3, 9, v3"); a("v_lshl_add_u32 v244, v2, 4, v3")
    a("s_waitcnt vmcnt(0)")
    perm16(136, 40)
    perm16(8, 56)
    a("s_barrier")
    stamp(8)
    gather([f"buffer_load_dwordx4 {V(72+4*e)}, v7, {WS}, s{80+(e>>2)} offen offset:{1024*(e&3)} sc1" for e in range(8)], [75+4*e for e in range(8)])
    stamp(9)
    a("v_max3_f32 v2, v74, v78, v82"); a("v_max3_f32 v2, v2, v86, v90"); a("v_max3_f32 v2, v2, v94, v98"); a("v_max_f32 v2, v2, v102")
    a("v_mov_b32 v3, v2"); a("v_permlane32_swap_b32 v2, v3"); a("v_max_f32 v2, v2, v3")
    for e in range(8): a(f"v_sub_f32 v{74+4*e}, v{74+4*e}, v2")
    for e in range(8): a(f"v_exp_f32 v{74+4*e}, v{74+4*e}")
    for e in range(8):
        g = 72 + 4*e
        a(f"v_lshlrev_b32 v104, 16, v{g}"); a(f"v_and_b32 v105, 0xffff0000, v{g}"); a(f"v_lshlrev_b32 v106, 16, v{g+1}"); a(f"v_and_b32 v107, 0xffff0000, v{g+1}")
        if e == 0:
            a(f"v_pk_mul_f32 v[108:109], v[104:105], {V(g+2,2)} op_sel_hi:[1,0]"); a(f"v_pk_mul_f32 v[110:111], v[106:107], {V(g+2,2)} op_sel_hi:[1,0]")
        else:
            a(f"v_pk_fma_f32 v[108:109], v[104:105], {V(g+2,2)}, v[108:109] op_sel_hi:[1,0,1]"); a(f"v_pk_fma_f32 v[110:111], v[106:107], {V(g+2,2)}, v[110:111] op_sel_hi:[1,0,1]")
            a(f"v_add_f32 v74, v74, v{g+2}")
    a("v_mov_b32 v3, v74"); a("v_permlane32_swap_b32 v74, v3"); a("v_add_f32 v74, v74, v3"); a("v_rcp_f32 v74, v74")
    a("v_permlane32_swap_b32 v108, v110"); a("v_permlane32_swap_b32 v109, v111")
    a("v_add_f32 v108, v108, v110"); a("v_add_f32 v109, v109, v111")
    a("v_mul_f32 v108, v108, v74"); a("v_mul_f32 v109, v109, v74")
    a("v_cvt_pk_bf16_f32 v108, v108, v109")
    a(f"ds_write_b32 v240, v108 offset:{LA_ACT}")
    a("s_waitcnt lgkmcnt(0)")
    a("s_barrier")
    a(f"ds_read_b64 v[76:77], v241 offset:{LA_ACT}")
    a(f"s_lshl_b32 s80, {S_H}, 14"); a(f"s_add_u32 s80, s80, {CTX}"); a(f"s_lshl_b32 s81, {S_Q}, 7"); a("s_add_u32 s81, s81, s80")
    a(f"v_mov_b32 v71, {S_TAG}")
    a("s_waitcnt lgkmcnt(0)")
    skip = gemm128(136, 76, 160, LA_R4, 242, [512*i for i in range(8)], 243, 64)
    a(f"buffer_store_dwordx4 {V(68)}, v244, {WS}, s81 offen sc1")
    a.label(skip)
    stamp(10)
    a(f"s_lshl_b32 s81, {S_WAVE}, 11"); a("s_add_u32 s80, s80, s81")
    a("v_lshlrev_b32 v2, 9, v5"); a("v_lshl_add_u32 v2, v6, 4, v2")
    gather([f"buffer_load_dwordx4 {V(80+4*z)}, v2, {WS}, s80 offen offset:{256*z} sc1" for z in range(2)], [83, 87])
    stamp(11)
    unpack24(80, 83); unpack24(84, 87)
    a("v_pk_add_f32 v[80:81], v[80:81], v[84:85]"); a("v_pk_add_f32 v[82:83], v[82:83], v[86:87]")
    for k in range(4): a(f"v_add_f32_dpp v{72+k}, v{80+k}, v{80+k} row_ror:8 {DPPM}")
    a("v_cvt_pk_bf16_f32 v76, v72, v73"); a("v_cvt_pk_bf16_f32 v77, v74, v75")
    a(f"s_mov_b32 s88, {S_H}")

    a.label("L_S5")
    LR5 = 65536
    a("v_and_b32 v2, 7, v1"); a("v_lshlrev_b32 v3, 9, v5"); a("v_lshl_add_u32 v3, v2, 6, v3")
    a(f"s_lshl_b32 s82, {S_WAVE}, 12"); a(f"s_add_u32 s82, s82, {LR5}"); a("v_add_u32 v242, s82, v3")
    a("v_lshlrev_b32 v243, 4, v0"); a(f"v_add_u32 v243, {LR5}, v243")
    a("v_bfe_u32 v2, v0, 2, 3"); a("v_lshlrev_b32 v2, 15, v2"); a("v_bfe_u32 v3, v0, 5, 2"); a("v_lshl_add_u32 v2, v3, 13, v2")
    a("v_bfe_u32 v3, v0, 7, 1"); a("v_lshl_add_u32 v2, v3, 12, v2"); a("v_and_b32 v3, 3, v0"); a("v_lshl_add_u32 v244, v3, 4, v2")
    a(f"s_lshl_b32 s80, {S_Q}, 18"); a("s_lshl_b32 s81, s88, 6"); a("s_add_u32 s80, s80, s81"); a(f"s_add_u32 s80, s80, {FIN}")
    a(f"v_mov_b32 v71, {S_TAG}")
    skip = gemm128(8, 76, 160, LR5, 242, [2048*(i>>2) + 16*(i&3) for i in range(8)], 243, 64)
    a(f"buffer_store_dwordx4 {V(68)}, v244, {WS}, s80 offen sc1")
    a.label(skip)
    stamp(12)
    a(f"s_cmp_lg_u32 {S_WAVE}, 7")
    a("s_cbranch_scc1 L_fin")
    a(f"s_lshl_b32 s80, {S_W}, 12"); a(f"s_add_u32 s80, s80, {FIN}")
    a(f"s_bfe_u32 s81, {S_W}, 0x30003"); a("s_lshl_b32 s81, s81, 10"); a(f"s_lshr_b32 s82, {S_W}, 6"); a("s_lshl_b32 s82, s82, 8"); a("s_add_u32 s81, s81, s82")
    a(f"s_bfe_u32 s82, {S_W}, 0x20001"); a("s_lshl_b32 s82, s82, 6"); a("s_add_u32 s81, s81, s82"); a(f"s_and_b32 s82, {S_W}, 1"); a("s_lshl3_add_u32 s81, s82, s81")
    a("v_and_b32 v3, 3, v1"); a("v_lshlrev_b32 v3, 1, v3"); a("v_lshl_add_u32 v4, v5, 4, v3")
    a(f"v_sub_f32 v2, 1.0, {S_GATE}")
    gather([f"buffer_load_dwordx4 {V(80+4*e)}, v7, {WS}, s80 offen offset:{1024*e} sc1" for e in range(4)], [83+4*e for e in range(4)])
    stamp(13)
    for e in range(4): unpack24(80+4*e, 83+4*e)
    a("v_pk_add_f32 v[80:81], v[80:81], v[84:85]"); a("v_pk_add_f32 v[82:83], v[82:83], v[86:87]")
    a("v_pk_add_f32 v[88:89], v[88:89], v[92:93]"); a("v_pk_add_f32 v[90:91], v[90:91], v[94:95]")
    for k in range(4): a(f"v_mul_f32 v{88+k}, v{88+k}, v2")
    for k in range(4): a(f"v_fmac_f32 v{88+k}, {S_GATE}, v{80+k}")
    a("v_permlane32_swap_b32 v88, v90"); a("v_permlane32_swap_b32 v89, v91")
    a("v_add_f32 v88, v88, v90"); a("v_add_f32 v89, v89, v91")
    a("v_permlane16_swap_b32 v88, v89"); a("v_add_f32 v88, v88, v89")
    a(f"v_add_f32_dpp v88, v88, v88 row_ror:4 {DPPM}"); a(f"v_add_f32_dpp v88, v88, v88 row_ror:8 {DPPM}")
    a("v_cvt_pk_bf16_f32 v88, v88, v88")
    a("s_mov_b32 exec_lo, 0x000f000f"); a("s_mov_b32 exec_hi, 0x000f000f")
    a(f"buffer_store_short v88, v4, {SO}, s81 offen")
    a(f"s_cmp_lg_u32 {S_W}, 0")
    a("s_cbranch_scc1 L_fin")
    a("s_mov_b64 exec, 1")
    a("v_mov_b32 v2, 0")
    a(f"buffer_store_dword v71, v2, {WS}, 0 offen sc1")
    a.label("L_fin")
    if dev:
        a("s_mov_b64 exec, -1")
        stamp(14)
        a(f"s_lshl_b32 s80, {S_W}, 3"); a(f"s_add_u32 s80, s80, {S_WAVE}"); a("s_lshl_b32 s80, s80, 6"); a(f"s_add_u32 s80, s80, {TS}")
        a("v_lshlrev_b32 v2, 2, v1")
        a("s_mov_b64 exec, 0xffff")
        a(f"buffer_store_dword v255, v2, {WS}, s80 offen")
        a(f"s_cmp_lg_u32 {S_WAVE}, 7")
        a("s_cbranch_scc1 L_end")
        srd(SO, "dbg", 256)
        a(f"buffer_atomic_umax v255, v2, {SO}, 0 offen sc1")
    a.label("L_end")
    return a

HEAD = """; gated_mix decode: single persistent kernel, 256 workgroups x 512 threads (generated by work/gen.py)
; @launch grid=(256,1,1) block=(512,1,1) lds=163840
.amdgcn_target "amdgcn-amd-amdhsa--gfx950"
.text
.globl {n}_kernel
.p2align 8
.type {n}_kernel,@function
{n}_kernel:
"""
TAIL = """s_endpgm
.section .rodata,"a"
.p2align 6
.amdhsa_kernel {n}_kernel
  .amdhsa_next_free_vgpr 256
  .amdhsa_next_free_sgpr 102
  .amdhsa_accum_offset 256
  .amdhsa_group_segment_fixed_size 0
  .amdhsa_kernarg_size 120
  .amdhsa_user_sgpr_count 2
  .amdhsa_user_sgpr_kernarg_segment_ptr 1
  .amdhsa_system_sgpr_workgroup_id_x 1
.end_amdhsa_kernel
"""
def full(dev=False, opt=None):
    a = gen(dev, opt)
    return HEAD.format(n=NAME) + a.text() + TAIL.format(n=NAME)

if __name__ == "__main__":
    open("dev.s", "w").write(full(True))
    open("rel.s", "w").write(full(False))
    print("ok")
```

```python
import sys, struct, math
sys.path.insert(0, "work")
from asmlib import Asm

NAME = "gated_mix__compressed_kv_cla__sliding_block_cached__decode"
QA, QB, QABS, CTX, OB, TS, FIN, PART, WSEND = 0x10000, 0x30000, 0x80000, 0x100000, 0x180000, 0x1C0000, 0x200000, 0x400000, 0xC00000
SCALE = (128 ** -0.5) * math.log2(math.e)
def f2u(x): return struct.unpack("<I", struct.pack("<f", x))[0]
DPPM = "row_mask:0xf bank_mask:0xf"

S_W, S_WAVE, S_IDX, S_TAG, S_SPIN, S_GATE = "s2", "s3", "s4", "s5", "s6", "s7"
WS, SA, SB, SC, SD, SE, SX, SG, SO = [f"s[{i}:{i+3}]" for i in (8, 12, 16, 20, 24, 28, 32, 36, 40)]
S_LO, S_HI = "s44", "s45"
S_H, S_Q = "s46", "s47"
P = dict(x=48, ckv=50, wqa=52, wuk=54, wuv=56, woa=58, bx=60, kc=62, vc=64, wqb=66, wob=68, gate=70, out=72, dbg=74, ws=76)

def gen(dev=False, opt=None):
    opt = opt or {}
    a = Asm()
    st = [0]
    def stamp(k):
        if not dev: return
        a("s_memrealtime s[100:101]")
        a("s_waitcnt lgkmcnt(0)")
        a(f"v_writelane_b32 v255, s100, {k}")
    def srd(dst, ptr, nbytes):
        b = int(dst[2:].split(":")[0])
        a(f"s_mov_b32 s{b}, s{P[ptr]}"); a(f"s_mov_b32 s{b+1}, s{P[ptr]+1}")
        a(f"s_mov_b32 s{b+2}, {hex(nbytes)}"); a(f"s_mov_b32 s{b+3}, 0x00020000")
    def V(b, n=4): return f"v[{b}:{b+n-1}]"
    def gather(loads, tagregs):
        lp = a.newlabel("L_poll"); dn = a.newlabel("L_got")
        a.label(lp)
        for l in loads: a(l)
        a("s_waitcnt vmcnt(0)")
        for r in tagregs: a(f"v_cmpx_eq_u32 vcc, {S_TAG}, v{r}")
        a("s_cmp_eq_u64 exec, -1")
        a("s_mov_b64 exec, -1")
        a(f"s_cbranch_scc1 {dn}")
        a(f"s_sub_u32 {S_SPIN}, {S_SPIN}, 1")
        a(f"s_cmp_gt_i32 {S_SPIN}, 0")
        a(f"s_cbranch_scc1 {lp}")
        a.label(dn)
    def perm16(dst, src):
        for i in range(8):
            for p in range(2):
                a(f"v_perm_b32 v{dst+2*i+p}, v{src+4*(2*p+1)+(i>>1)}, v{src+4*(2*p)+(i>>1)}, {S_HI if i&1 else S_LO}")
    def gate_load(vd):
        a(f"s_bfe_u32 s78, {S_W}, 0x30003"); a("s_lshl_b32 s78, s78, 10")
        a(f"v_lshlrev_b32 v2, 4, v1")
        a(f"buffer_load_dwordx4 {V(vd)}, v2, {SX}, s78 offen")
        a(f"buffer_load_dwordx4 {V(vd+4)}, v2, {SG}, 0 offen")
    def gate_calc(vd):
        a("v_mov_b32 v2, 0")
        for q in range(4):
            a(f"v_lshlrev_b32 v3, 16, v{vd+q}"); a(f"v_lshlrev_b32 v4, 16, v{vd+4+q}")
            a(f"v_fmac_f32 v2, v3, v4")
            a(f"v_and_b32 v3, 0xffff0000, v{vd+q}"); a(f"v_and_b32 v4, 0xffff0000, v{vd+4+q}")
            a(f"v_fmac_f32 v2, v3, v4")
        for d in (1, 2, 4, 8):
            a(f"v_add_f32_dpp v2, v2, v2 row_ror:{d} {DPPM}")
        a("v_mov_b32 v3, v2"); a("v_permlane16_swap_b32 v2, v3"); a("v_add_f32 v2, v2, v3")
        a("v_mov_b32 v3, v2"); a("v_permlane32_swap_b32 v2, v3"); a("v_add_f32 v2, v2, v3")
        a(f"v_mul_f32 v2, {hex(f2u(-math.log2(math.e)))}, v2")
        a("v_exp_f32 v2, v2"); a("v_add_f32 v2, 1.0, v2"); a("v_rcp_f32 v2, v2")
        a(f"v_readfirstlane_b32 {S_GATE}, v2")
    def gemm128(wop, act, acc, ldsbase, vlw, woffs, vrd, rd):
        for i in range(8):
            a(f"v_mfma_f32_16x16x16_bf16 {V(acc+4*i)}, {V(wop+2*i,2)}, {V(act,2)}, 0")
        a("s_mov_b64 exec, s[96:97]")
        for i in range(8):
            a(f"ds_write_b128 v{vlw}, {V(acc+4*i)} offset:{woffs[i]}")
        a("s_mov_b64 exec, -1")
        a("s_waitcnt lgkmcnt(0)")
        a("s_barrier")
        skip = a.newlabel("L_nored")
        a(f"s_cmp_ge_u32 {S_WAVE}, 4")
        a(f"s_cbranch_scc1 {skip}")
        for s in range(8):
            a(f"ds_read_b128 {V(acc+4*s)}, v{vrd} offset:{s*4096}")
        for s in range(1, 8):
            a(f"s_waitcnt lgkmcnt({7-s})")
            src = acc if s == 1 else rd
            a(f"v_pk_add_f32 {V(rd,2)}, {V(src,2)}, {V(acc+4*s,2)}")
            a(f"v_pk_add_f32 {V(rd+2,2)}, {V(src+2,2)}, {V(acc+4*s+2,2)}")
        for k in range(3):
            a(f"v_perm_b32 v{rd+4+k}, v{rd+k}, v{rd+3}, s{92+k}")
        return skip
    def unpack24(g, t):
        a(f"v_perm_b32 v{t}, v{g+1}, v{g}, s90")
        a(f"v_perm_b32 v{t}, v{g+2}, v{t}, s91")

    a(f"s_cmp_ge_u32 {S_W}, 256")
    a("s_cbranch_scc1 L_end")
    if dev:
        a("v_mov_b32 v255, 0")
        a("s_memrealtime s[100:101]"); a("s_waitcnt lgkmcnt(0)"); a("s_not_b32 s100, s100"); a("v_writelane_b32 v255, s100, 15")
    a("s_load_dwordx16 s[48:63], s[0:1], 0")
    a("s_load_dwordx8 s[64:71], s[0:1], 64")
    a("s_load_dwordx4 s[72:75], s[0:1], 96")
    a("s_load_dwordx2 s[76:77], s[0:1], 112")
    a("v_lshrrev_b32 v2, 6, v0")
    a("v_and_b32 v1, 63, v0")
    a(f"v_readfirstlane_b32 {S_WAVE}, v2")
    a(f"s_and_b32 s78, {S_W}, 7"); a(f"s_lshr_b32 s79, {S_W}, 4"); a(f"s_lshl3_add_u32 {S_IDX}, s79, s78")
    a(f"s_lshr_b32 {S_H}, {S_IDX}, 2"); a(f"s_and_b32 {S_Q}, {S_IDX}, 3")
    a(f"s_mov_b32 {S_LO}, 0x05040100"); a(f"s_mov_b32 {S_HI}, 0x07060302")
    a(f"s_mov_b32 {S_SPIN}, 20000"); a(f"s_mov_b32 {S_GATE}, 0")
    a("s_mov_b32 s90, 0x0c04000c"); a("s_mov_b32 s91, 0x0402010c")
    a("s_mov_b32 s92, 0x07060501"); a("s_mov_b32 s93, 0x07060502"); a("s_mov_b32 s94, 0x07060503")
    a("s_mov_b32 s96, 0x00ff00ff"); a("s_mov_b32 s97, 0x00ff00ff")
    a("v_lshrrev_b32 v5, 4, v1")
    a("v_and_b32 v6, 15, v1")
    a("v_lshlrev_b32 v7, 4, v1")
    a(f"s_bitcmp1_b32 {S_W}, 3")
    a("s_waitcnt lgkmcnt(0)")
    stamp(10)
    a(f"s_load_dword {S_TAG}, s[76:77], 0")
    srd(WS, "ws", WSEND); srd(SX, "x", 8192); srd(SG, "gate", 1024); srd(SO, "out", 8192)
    a("s_cbranch_scc0 L_A")

    a.c("==== B role")
    LB_S1, LB_QA, LB_QB, LB_ML, LB_LSE, LB_O, LB_R = 0, 40960, 43520, 44544, 44800, 49152, 65536
    a(f"s_cmp_lt_u32 {S_IDX}, 64")
    a(f"s_cselect_b32 s12, s{P['wqa']}, s{P['wqb']}"); a(f"s_cselect_b32 s13, s{P['wqa']+1}, s{P['wqb']+1}")
    a("s_mov_b32 s14, 0x400000"); a("s_mov_b32 s15, 0x00020000")
    a(f"s_and_b32 s78, {S_IDX}, 63"); a("s_lshl_b32 s79, s78, 7")
    a(f"s_lshl_b32 s80, {S_WAVE}, 19"); a("s_add_u32 s80, s80, s79")
    a("v_lshrrev_b32 v2, 3, v1"); a("v_lshlrev_b32 v2, 16, v2"); a("v_and_b32 v3, 7, v1"); a("v_lshl_add_u32 v2, v3, 4, v2")
    for e in range(8):
        a(f"buffer_load_dwordx4 {V(8+4*e)}, v2, {SA}, s80 offen nt")
        if e < 7: a("s_add_u32 s80, s80, 8192")
    a("v_lshlrev_b32 v4, 10, v3"); a("v_lshrrev_b32 v2, 3, v1"); a("v_lshl_add_u32 v4, v2, 4, v4")
    a(f"s_lshl_b32 s81, {S_WAVE}, 7")
    a(f"buffer_load_dwordx4 {V(40)}, v4, {SX}, s81 offen")
    srd(SB, "wuk", 0x400000)
    a(f"s_lshl_b32 s82, {S_Q}, 20"); a(f"s_lshl_b32 s83, {S_WAVE}, 17"); a("s_add_u32 s82, s82, s83")
    a(f"s_lshl_b32 s83, {S_H}, 8"); a("s_add_u32 s82, s82, s83")
    a("v_lshlrev_b32 v2, 13, v6"); a("v_lshl_add_u32 v2, v5, 4, v2")
    for s in range(4):
        a(f"buffer_load_dwordx4 {V(44+4*s)}, v2, {SB}, s82 offen offset:{64*s} nt")
    srd(SC, "wob", 0x400000); srd(SD, "kc", 0x4000000); srd(SE, "vc", 0x4000000)
    stamp(0)
    a("v_bfe_u32 v2, v1, 3, 1"); a("v_mul_u32_u24 v2, 2560, v2"); a("v_and_b32 v4, 1, v5"); a("v_lshl_add_u32 v2, v4, 7, v2")
    a("v_lshl_add_u32 v2, v3, 4, v2"); a(f"s_mul_i32 s83, {S_WAVE}, 5120"); a("v_add_u32 v128, s83, v2")
    a("v_and_b32 v2, 3, v0"); a("v_bfe_u32 v3, v0, 7, 1"); a("v_lshl_add_u32 v2, v3, 2, v2"); a("v_mul_u32_u24 v2, 320, v2")
    a("v_lshrrev_b32 v4, 8, v0"); a("v_lshl_add_u32 v2, v4, 7, v2"); a("v_and_b32 v129, 0x7c, v0"); a("v_add_u32 v129, v129, v2")
    a("v_bfe_u32 v2, v0, 4, 3"); a("v_lshl_add_u32 v2, v2, 1, v3")
    a("v_bfe_u32 v3, v0, 2, 2"); a("v_lshl_add_u32 v3, v4, 2, v3")
    a(f"s_cmp_lt_u32 {S_IDX}, 64")
    a("s_cselect_b32 s83, 128, 16"); a("s_cselect_b32 s84, 16, 16384"); a(f"s_cselect_b32 s85, {QA>>16}, {QB>>16}"); a("s_lshl_b32 s85, s85, 16")
    a("s_lshl_b32 s86, s83, 4"); a("s_mul_i32 s86, s86, s78"); a("s_add_u32 s85, s85, s86")
    a("v_mul_u32_u24 v2, s83, v2"); a("v_mad_u32_u24 v130, v3, s84, v2")
    a("s_waitcnt vmcnt(4)")
    stamp(1)
    for i in range(8):
        for p in range(4):
            a(f"v_perm_b32 v{64+4*i+p}, v{8+4*(2*p+1)+(i>>1)}, v{8+4*(2*p)+(i>>1)}, {S_HI if i&1 else S_LO}")
        if i >= 1: a(f"v_mfma_f32_16x16x32_bf16 {V(96+4*(i-1))}, {V(40)}, {V(64+4*(i-1))}, 0")
    a(f"v_mfma_f32_16x16x32_bf16 {V(96+28)}, {V(40)}, {V(64+28)}, 0")
    a("s_mov_b32 exec_lo, 0x00ff00ff"); a("s_mov_b32 exec_hi, 0xff00ff00")
    for i in range(8):
        a(f"ds_write_b128 v128, {V(96+4*i)} offset:{LB_S1+320*i}")
    a("s_mov_b64 exec, -1")
    a("s_waitcnt lgkmcnt(0)")
    a(f"s_add_u32 {S_TAG}, {S_TAG}, 0x9e3779b9")
    a("s_barrier")
    for s in range(8):
        a(f"ds_read2st64_b32 {V(64+2*s,2)}, v129 offset0:{20*s} offset1:{20*s+10}")
    a(f"v_mov_b32 v135, {S_TAG}")
    for s in range(1, 8):
        a(f"s_waitcnt lgkmcnt({7-s})")
        a(f"v_pk_add_f32 v[64:65], v[64:65], {V(64+2*s,2)}")
    a("v_add_f32 v64, v64, v65")
    a(f"v_mov_b32_dpp v65, v64 quad_perm:[1,1,3,3] {DPPM}")
    a("v_cvt_pk_bf16_f32 v132, v64, v65")
    a(f"v_mov_b32_dpp v133, v132 quad_perm:[2,2,2,2] {DPPM}")
    a("s_mov_b32 exec_lo, 0x11111111"); a("s_mov_b32 exec_hi, 0x11111111")
    a(f"buffer_store_dwordx4 {V(132)}, v130, {WS}, s85 offen sc1")
    a("s_mov_b64 exec, -1")
    stamp(2)
    a(f"s_lshr_b32 s78, {S_IDX}, 4"); a(f"s_bfe_u32 s79, {S_IDX}, 0x30001")
    a(f"s_cmp_lt_u32 {S_WAVE}, 4")
    a("s_cbranch_scc0 L_B_qb")
    a(f"s_lshl_b32 s80, {S_H}, 12"); a(f"s_lshl_b32 s81, {S_WAVE}, 10"); a("s_add_u32 s80, s80, s81"); a(f"s_add_u32 s80, s80, {QA}")
    a("v_and_b32 v2, 7, v1"); a("v_mul_u32_u24 v2, 272, v2"); a("v_and_b32 v3, 0x38, v1"); a("v_add_u32 v2, v2, v3")
    a(f"s_lshl_b32 s81, {S_WAVE}, 6"); a(f"s_add_u32 s81, s81, {LB_QA}")
    a("s_branch L_B_qg")
    a.label("L_B_qb")
    a("s_lshl_b32 s80, s78, 14"); a("s_lshl_b32 s81, s79, 11"); a("s_add_u32 s80, s80, s81")
    a(f"s_and_b32 s81, {S_WAVE}, 1"); a("s_lshl_b32 s82, s81, 10"); a("s_add_u32 s80, s80, s82"); a(f"s_add_u32 s80, s80, {QB}")
    a("v_lshlrev_b32 v2, 3, v1")
    a("s_lshl_b32 s81, s81, 9"); a(f"s_add_u32 s81, s81, {LB_QB}")
    a.label("L_B_qg")
    a("v_add_u32 v2, s81, v2")
    gather([f"buffer_load_dwordx4 {V(64)}, v7, {WS}, s80 offen sc1"], [67])
    a("ds_write_b64 v2, v[64:65]")
    a("v_and_b32 v2, 7, v1"); a("v_mul_u32_u24 v2, 272, v2"); a("v_lshl_add_u32 v2, v5, 4, v2")
    a("v_bfe_u32 v3, v1, 2, 2"); a("v_lshlrev_b32 v3, 8, v3"); a("v_lshl_add_u32 v3, v5, 6, v3")
    a("v_and_b32 v4, 3, v1"); a("v_lshl_add_u32 v3, v4, 4, v3")
    a("s_waitcnt lgkmcnt(0)")
    a("s_barrier")
    stamp(3)
    for s in range(4):
        a(f"ds_read_b128 {V(64+4*s)}, v2 offset:{LB_QA+64*s}")
    a(f"ds_read_b128 {V(152)}, v3 offset:{LB_QB}")
    a("v_and_b32 v2, 7, v1"); a("v_lshlrev_b32 v2, 16, v2"); a("v_lshrrev_b32 v4, 5, v1"); a("v_lshl_add_u32 v2, v4, 11, v2")
    a("v_and_b32 v4, 1, v5"); a("v_lshl_add_u32 v2, v4, 4, v2")
    a(f"s_lshr_b32 s80, {S_H}, 4"); a("s_lshl_b32 s80, s80, 15"); a(f"s_lshl_b32 s81, {S_WAVE}, 12"); a("s_add_u32 s80, s80, s81")
    a(f"s_lshl_b32 s81, {S_Q}, 9"); a("s_add_u32 s80, s80, s81"); a(f"s_and_b32 s81, {S_H}, 15"); a("s_lshl_b32 s81, s81, 5")
    a("s_add_u32 s80, s80, s81"); a(f"s_add_u32 s80, s80, {QABS}")
    for s in range(4):
        a(f"s_waitcnt lgkmcnt({4-s})")
        a(f"v_mfma_f32_16x16x32_bf16 {V(96)}, {V(44+4*s)}, {V(64+4*s)}, {'0' if s==0 else V(96)}")
    a(f"s_mov_b32 s81, {hex(f2u(SCALE))}")
    for r in range(4): a(f"v_mul_f32 v{96+r}, s81, v{96+r}")
    a("v_cvt_pk_bf16_f32 v132, v96, v97"); a("v_cvt_pk_bf16_f32 v133, v98, v99")
    a("s_mov_b64 exec, s[96:97]")
    a(f"buffer_store_dwordx4 {V(132)}, v2, {WS}, s80 offen sc1")
    a("s_mov_b64 exec, -1")
    stamp(4)
    a(f"s_cmp_lg_u32 {S_WAVE}, 7")
    a("s_cbranch_scc1 L_B_ng")
    gate_load(192)
    a.label("L_B_ng")
    a(f"s_lshr_b32 s80, {S_IDX}, 1"); a("s_lshl_b32 s80, s80, 20"); a(f"s_and_b32 s81, {S_IDX}, 1"); a("s_lshl_b32 s81, s81, 17")
    a("s_add_u32 s80, s80, s81"); a(f"s_lshl_b32 s81, {S_WAVE}, 14"); a("s_add_u32 s80, s80, s81"); a(f"s_add_u32 s80, s80, {3072*256}")
    for k in range(1, 4): a(f"s_add_u32 s{80+k}, s80, {4096*k}")
    for e in range(16):
        a(f"buffer_load_dwordx4 {V(8+4*e)}, v3, {SD}, s{80+(e>>2)} offen offset:{1024*(e&3)} nt")
    for e in range(16):
        a(f"buffer_load_dwordx4 {V(72+4*e)}, v7, {SE}, s{80+(e>>2)} offen offset:{1024*(e&3)} nt")
    a(f"s_lshl_b32 s84, {S_H}, 17"); a(f"s_lshl_b32 s85, {S_WAVE}, 14"); a("s_add_u32 s84, s84, s85"); a(f"s_lshl_b32 s85, {S_Q}, 8"); a("s_add_u32 s84, s84, s85")
    a("v_lshlrev_b32 v2, 12, v5"); a("v_lshl_add_u32 v2, v6, 4, v2")
    for e in range(4):
        a(f"buffer_load_dwordx4 {V(136+4*e)}, v2, {SC}, s84 offen offset:{1024*e} nt")
    a("s_waitcnt lgkmcnt(0)")
    def s_from(e):
        d = 160 + 4*(e & 3)
        a(f"v_mov_b32_dpp v{200+e}, v{d} quad_perm:[0,0,0,0] {DPPM}")
        for r in range(1, 4):
            a(f"v_add_f32_dpp v{200+e}, v{d+r}, v{200+e} quad_perm:[{r},{r},{r},{r}] {DPPM}")
    for e in range(16):
        a(f"s_waitcnt vmcnt({35-e})")
        a(f"v_mfma_f32_16x16x32_bf16 {V(160+4*(e&3))}, {V(8+4*e)}, {V(152)}, 0")
        if e >= 2: s_from(e-2)
    s_from(14); s_from(15)
    stamp(5)
    a("v_max3_f32 v2, v200, v201, v202")
    for e in range(3, 15, 2): a(f"v_max3_f32 v2, v2, v{200+e}, v{201+e}")
    a("v_max_f32 v2, v2, v215")
    a("v_mov_b32 v3, v2"); a("v_permlane16_swap_b32 v2, v3"); a("v_max_f32 v2, v2, v3")
    a("v_mov_b32 v3, v2"); a("v_permlane32_swap_b32 v2, v3"); a("v_max_f32 v2, v2, v3")
    a(f"s_mov_b32 s81, {hex(f2u(SCALE))}")
    a("v_mul_f32 v216, s81, v2")
    for e in range(16): a(f"v_fma_f32 v{200+e}, v{200+e}, s81, -v216")
    for e in range(16): a(f"v_exp_f32 v{200+e}, v{200+e}")
    a("v_add_f32 v217, v200, v201")
    for e in range(2, 16): a(f"v_add_f32 v217, v217, v{200+e}")
    a("v_mov_b32 v3, v217"); a("v_permlane16_swap_b32 v217, v3"); a("v_add_f32 v217, v217, v3")
    a("v_mov_b32 v3, v217"); a("v_permlane32_swap_b32 v217, v3"); a("v_add_f32 v217, v217, v3")
    a("v_bfe_u32 v4, v1, 2, 2"); a("v_lshlrev_b32 v2, 6, v4")
    a(f"s_lshl_b32 s82, {S_WAVE}, 3"); a("v_add_u32 v3, s82, v2")
    a(f"ds_write_b64 v3, v[216:217] offset:{LB_ML}")
    a(f"s_cmp_lg_u32 {S_WAVE}, 7")
    a("s_cbranch_scc1 L_B_ng2")
    a("v_mov_b32 v218, v2")
    gate_calc(192)
    a("v_mov_b32 v2, v218"); a("v_bfe_u32 v4, v1, 2, 2")
    a.label("L_B_ng2")
    a("s_waitcnt lgkmcnt(0)")
    a("s_barrier")
    for k in range(4): a(f"ds_read_b128 {V(160+4*k)}, v2 offset:{LB_ML+16*k}")
    a("s_waitcnt lgkmcnt(0)")
    a("v_max3_f32 v218, v160, v162, v164"); a("v_max3_f32 v218, v218, v166, v168"); a("v_max3_f32 v218, v218, v170, v172"); a("v_max_f32 v218, v218, v174")
    for k in range(8): a(f"v_sub_f32 v{160+2*k}, v{160+2*k}, v218")
    for k in range(8): a(f"v_exp_f32 v{160+2*k}, v{160+2*k}")
    a("v_mul_f32 v219, v160, v161")
    for k in range(1, 8): a(f"v_fmac_f32 v219, v{160+2*k}, v{161+2*k}")
    a("v_sub_f32 v216, v216, v218"); a("v_exp_f32 v216, v216"); a("v_rcp_f32 v217, v219"); a("v_log_f32 v219, v219")
    a("v_mul_f32 v216, v216, v217"); a("v_add_f32 v219, v219, v218")
    a("v_lshlrev_b32 v4, 2, v4")
    a(f"ds_write_b32 v4, v219 offset:{LB_LSE}")
    for e in range(16): a(f"v_mul_f32 v{200+e}, v{200+e}, v216")
    for k in range(8): a(f"v_cvt_pk_bf16_f32 v{220+k}, v{200+2*k}, v{201+2*k}")
    a(f"s_lshl_b32 s82, {S_WAVE}, 11"); a(f"s_add_u32 s82, s82, {LB_O}"); a("v_add_u32 v228, s82, v7")
    a("v_lshlrev_b32 v229, 4, v0")
    a("v_lshlrev_b32 v230, 13, v5"); a("v_lshl_add_u32 v230, v6, 9, v230")
    a("s_lshl_b32 s82, s79, 15"); a(f"s_lshl_b32 s83, {S_WAVE}, 8"); a("s_add_u32 s82, s82, s83")
    a(f"s_and_b32 s83, {S_IDX}, 1"); a("s_lshl_b32 s83, s83, 7"); a("s_add_u32 s82, s82, s83")
    a("s_lshl_b32 s83, s78, 4"); a("s_add_u32 s82, s82, s83"); a(f"s_add_u32 s82, s82, {OB}")
    a("v_lshlrev_b32 v231, 2, v5")
    stamp(6)
    for z in range(2):
        for p in range(4):
            e = 8*z + 2*p
            a(f"s_waitcnt vmcnt({4+14-e})")
            for i in range(8):
                a(f"v_perm_b32 v{8+32*z+4*i+p}, v{72+4*(e+1)+(i>>1)}, v{72+4*e+(i>>1)}, {S_HI if i&1 else S_LO}")
        for i in range(8):
            a(f"v_mfma_f32_16x16x32_bf16 {V(160+4*i)}, {V(220+4*z)}, {V(8+32*z+4*i)}, {'0' if z==0 else V(160+4*i)}")
    for x in range(2):
        for k in range(1, 4): a(f"v_mov_b32 v{160+16*x+k}, v{160+16*x+4*k}")
        a(f"ds_write_b128 v228, {V(160+16*x)} offset:{1024*x}")
    a("s_waitcnt lgkmcnt(0)")
    a("s_barrier")
    stamp(7)
    a(f"s_cmp_ge_u32 {S_WAVE}, 2")
    a("s_cbranch_scc1 L_B_s5")
    for s in range(8): a(f"ds_read_b128 {V(160+4*s)}, v229 offset:{LB_O+2048*s}")
    a(f"ds_read_b32 v134, v231 offset:{LB_LSE}")
    for s in range(1, 8):
        a(f"s_waitcnt lgkmcnt({8-s})")
        a(f"v_pk_add_f32 v[160:161], v[160:161], {V(160+4*s,2)}"); a(f"v_pk_add_f32 v[162:163], v[162:163], {V(162+4*s,2)}")
    a("v_cvt_pk_bf16_f32 v132, v160, v161"); a("v_cvt_pk_bf16_f32 v133, v162, v163")
    a(f"v_mov_b32 v135, {S_TAG}")
    a("s_waitcnt lgkmcnt(0)")
    a(f"buffer_store_dwordx4 {V(132)}, v230, {WS}, s82 offen sc1")
    a.label("L_B_s5")
    a("s_waitcnt vmcnt(1)")
    a("s_waitcnt vmcnt(0)")
    perm16(8, 136)
    a(f"s_lshl_b32 s80, {S_H}, 13"); a(f"s_lshl_b32 s81, {S_WAVE}, 10"); a("s_add_u32 s80, s80, s81"); a(f"s_add_u32 s80, s80, {OB}")
    stamp(8)
    gather([f"buffer_load_dwordx4 {V(64)}, v7, {WS}, s80 offen sc1"], [67])
    stamp(9)
    a(f"v_sub_f32_dpp v2, v66, v66 row_ror:8 {DPPM}")
    a("v_exp_f32 v2, v2"); a("v_lshlrev_b32 v68, 16, v64"); a("v_add_f32 v2, 1.0, v2"); a("v_and_b32 v69, 0xffff0000, v64")
    a("v_rcp_f32 v2, v2"); a("v_lshlrev_b32 v70, 16, v65"); a("v_and_b32 v71, 0xffff0000, v65")
    for k in range(4): a(f"v_mul_f32 v{68+k}, v{68+k}, v2")
    for k in range(4): a(f"v_add_f32_dpp v{72+k}, v{68+k}, v{68+k} row_ror:8 {DPPM}")
    a("v_cvt_pk_bf16_f32 v76, v72, v73"); a("v_cvt_pk_bf16_f32 v77, v74, v75")
    a(f"s_add_u32 s88, {S_H}, 32")
    a("s_branch L_S5")

    a.label("L_A")
    a.c("==== A role")
    QR = 131072
    LA_P, LA_MX, LA_AL, LA_M = QR, QR + 8192, QR + 8704, QR + 8832
    LA_ACT, LA_R4 = 0, 8192
    srd(SA, "ckv", 0x2000000)
    a(f"s_cmp_ge_u32 {S_WAVE}, 4")
    a("s_cbranch_scc1 L_A_qk0")
    a(f"s_and_b32 s78, {S_IDX}, 7"); a("s_lshl_b32 s78, s78, 22"); a(f"s_lshr_b32 s79, {S_IDX}, 3"); a("s_lshl_b32 s79, s79, 18")
    a("s_add_u32 s78, s78, s79"); a(f"s_lshl_b32 s79, {S_WAVE}, 15"); a("s_add_u32 s78, s78, s79")
    a("s_mov_b32 m0, s79")
    def fsw(k): return ((k & 7) << 1) | ((k >> 3) & 1)
    for e in range(32):
        if e < 16: a(f"v_xor_b32 v{136+e}, {fsw(e)*16}, v7")
        a(f"buffer_load_dwordx4 v{136+(e&15)}, {SA}, s78 offen offset:{1024*(e&3)} nt lds")
        if (e & 3) == 3:
            a("s_add_u32 s78, s78, 4096")
            if e < 31: a("s_add_u32 m0, m0, 4096")
    a(f"s_add_u32 s78, s78, {131072-32768}")
    for e in range(32):
        a(f"buffer_load_dwordx4 {V(8+4*e)}, v{136+(e&15)}, {SA}, s78 offen offset:{1024*(e&3)} nt")
        if (e & 3) == 3 and e < 31: a("s_add_u32 s78, s78, 4096")
    a("v_add_u32 v252, s79, v7")
    stamp(0)
    a("s_branch L_A_c0")
    a.label("L_A_qk0")
    a(f"s_cmp_lg_u32 {S_WAVE}, 7")
    a("s_cbranch_scc1 L_A_ng")
    gate_load(192)
    a("s_waitcnt vmcnt(0)")
    gate_calc(192)
    a.label("L_A_ng")
    a(f"s_sub_u32 s79, {S_WAVE}, 4"); a("s_lshl_b32 s80, s79, 15")
    a("v_and_b32 v2, 7, v6"); a("v_lshlrev_b32 v2, 1, v2"); a("v_lshrrev_b32 v3, 3, v6"); a("v_or_b32 v2, v2, v3"); a("v_lshlrev_b32 v2, 4, v2")
    a("v_lshlrev_b32 v3, 10, v6"); a("v_lshl_add_u32 v3, v5, 8, v3"); a("v_add_u32 v3, s80, v3")
    for s in range(16): a(f"v_xad_u32 v{136+s}, v2, {s*16}, v3" if s*16 <= 64 else f"v_xor_b32 v{136+s}, {s*16}, v2")
    for s in range(16):
        if s*16 > 64: a(f"v_add_u32 v{136+s}, v{136+s}, v3")
    a("v_mov_b32 v253, 0xff7fffff"); a("v_mov_b32 v254, 0xff7fffff")
    a.label("L_A_c0")
    a("v_lshrrev_b32 v2, 2, v1")
    a("v_and_b32 v3, 7, v2"); a("v_lshlrev_b32 v3, 1, v3"); a("v_lshrrev_b32 v4, 5, v1"); a("v_or_b32 v3, v3, v4")
    a("v_bfe_u32 v4, v1, 1, 1"); a(f"s_lshl_b32 s80, {S_WAVE}, 3"); a("v_add_u32 v4, s80, v4"); a("v_xor_b32 v3, v3, v4")
    a("v_lshlrev_b32 v2, 10, v2"); a("v_and_b32 v4, 1, v1"); a("v_lshl_add_u32 v2, v4, 3, v2")
    for v in range(4):
        a(f"v_xor_b32 v4, {2*v}, v3"); a(f"v_lshl_add_u32 v{240+v}, v4, 4, v2"); a(f"v_add_u32 v{244+v}, 0x10000, v{240+v}")
    for r in range(40): a(f"v_mov_b32 v{200+r}, 0")
    for r in range(4): a(f"v_mov_b32 v{248+r}, 0x3f803f80")
    a("s_waitcnt lgkmcnt(0)")
    a(f"s_add_u32 {S_TAG}, {S_TAG}, 0x9e3779b9")
    srd(SB, "wuv", 0x400000); srd(SC, "woa", 0x400000)
    a("s_mov_b32 s89, 0")
    a(f"s_cmp_ge_u32 {S_WAVE}, 4")
    a("s_cbranch_scc1 L_A_qk1")
    a("s_waitcnt vmcnt(32)")
    stamp(1)
    a("s_barrier")
    a("s_barrier")
    a.label("L_A_ld_loop")
    a("s_barrier")
    a("s_branch L_A_pv")
    a.label("L_A_qk1")
    a(f"s_and_b32 s78, {S_IDX}, 7"); a("s_lshl_b32 s78, s78, 16"); a("s_lshl_b32 s80, s79, 14"); a("s_add_u32 s78, s78, s80"); a(f"s_add_u32 s80, s78, {QABS}")
    for k in range(1, 4): a(f"s_add_u32 s{80+k}, s80, {4096*k}")
    a("v_lshlrev_b32 v2, 3, v1"); a("s_lshl_b32 s84, s79, 13"); a(f"s_add_u32 s84, s84, {QR}"); a("v_add_u32 v2, s84, v2")
    stamp(0)
    gather([f"buffer_load_dwordx4 {V(8+4*e)}, v7, {WS}, s80 offen offset:{1024*e} sc1" for e in range(2)], [11, 15])
    stamp(1)
    gather([f"buffer_load_dwordx4 {V(8+4*e)}, v7, {WS}, s{80+(e>>2)} offen offset:{1024*(e&3)} sc1" for e in range(2, 16)], [11+4*e for e in range(2, 16)])
    for e in range(16): a(f"ds_write_b64 v2, {V(8+4*e,2)} offset:{512*e}")
    a(f"v_add_u32 v3, {QR}, v7")
    a("s_waitcnt lgkmcnt(0)")
    stamp(2)
    a("s_barrier")
    for k in range(32): a(f"ds_read_b128 {V(8+4*k)}, v3 offset:{1024*k}")
    a("s_waitcnt lgkmcnt(0)")
    a("s_barrier")
    stamp(3)
    a.label("L_A_qk_loop")
    def rdA(s):
        for T in range(2): a(f"ds_read_b128 {V(168+8*(s&3)+4*T)}, v{136+s} offset:{16384*T}")
    for s in range(4): rdA(s)
    for s in range(16):
        a(f"s_waitcnt lgkmcnt({min(6, 2*(15-s))})")
        for T in range(2):
            for u in range(2):
                acc = 152 + 8*T + 4*u
                a(f"v_mfma_f32_16x16x32_bf16 {V(acc)}, {V(168+8*(s&3)+4*T)}, {V(8+64*u+4*s)}, {'0' if s==0 else V(acc)}")
        if s + 4 < 16: rdA(s+4)
    a("v_lshrrev_b32 v4, 5, v1"); a("v_lshlrev_b32 v4, 8, v4"); a("v_lshl_add_u32 v4, v6, 4, v4")
    a("s_lshl_b32 s80, s79, 2"); a(f"s_add_u32 s80, s80, {LA_MX}"); a("v_add_u32 v4, s80, v4")
    a(f"v_lshlrev_b32 v168, 4, v6"); a(f"v_add_u32 v168, {LA_MX}, v168")
    for u in range(2):
        b0, b1 = 152+4*u, 160+4*u
        a(f"v_max3_f32 v{2+u}, v{b0}, v{b0+1}, v{b0+2}"); a(f"v_max3_f32 v{2+u}, v{2+u}, v{b0+3}, v{b1}")
        a(f"v_max3_f32 v{2+u}, v{2+u}, v{b1+1}, v{b1+2}"); a(f"v_max_f32 v{2+u}, v{2+u}, v{b1+3}")
    a("v_permlane32_swap_b32 v2, v3"); a("v_max_f32 v2, v2, v3")
    a("v_mov_b32 v3, v2"); a("v_permlane16_swap_b32 v2, v3"); a("v_max_f32 v2, v2, v3")
    a("ds_write_b32 v4, v2")
    a("s_waitcnt lgkmcnt(0)")
    a("s_barrier")
    a(f"ds_read_b128 {V(172)}, v168"); a(f"ds_read_b128 {V(176)}, v168 offset:256")
    a("s_lshl_b32 s80, s79, 11"); a(f"s_add_u32 s80, s80, {LA_P}"); a("v_add_u32 v4, s80, v7")
    a(f"v_lshlrev_b32 v169, 2, v6"); a(f"v_add_u32 v169, {LA_AL}, v169")
    for u in range(2):
        a(f"s_waitcnt lgkmcnt({1-u})")
        a(f"v_max3_f32 v{2+u}, v{172+4*u}, v{173+4*u}, v{174+4*u}"); a(f"v_max3_f32 v{2+u}, v{2+u}, v{175+4*u}, v{253+u}")
        regs = [152+4*u+r for r in range(4)] + [160+4*u+r for r in range(4)]
        for r in regs: a(f"v_sub_f32 v{r}, v{r}, v{2+u}")
        for r in regs: a(f"v_exp_f32 v{r}, v{r}")
        for k in range(4): a(f"v_cvt_pk_bf16_f32 v{180+4*u+k}, v{regs[2*k]}, v{regs[2*k+1]}")
        a(f"ds_write_b128 v4, {V(180+4*u)} offset:{1024*u}")
    for u in range(2):
        a(f"v_sub_f32 v{253+u}, v{253+u}, v{2+u}"); a(f"v_exp_f32 v{253+u}, v{253+u}")
        a(f"ds_write_b32 v169, v{2+u} offset:{128+64*u}")
        a(f"ds_write_b32 v169, v{253+u} offset:{64*u}")
        a(f"v_mov_b32 v{253+u}, v{2+u}")
    a("s_waitcnt lgkmcnt(0)")
    a.label("L_A_pv")
    a("s_barrier")
    a(f"v_add_u32 v3, {LA_P}, v7")
    a(f"v_lshlrev_b32 v2, 4, v5"); a(f"v_add_u32 v2, {LA_AL}, v2")
    def rdPV(j):
        for u in range(2): a(f"ds_read_b128 {V(152+8*(j&1)+4*u)}, v3 offset:{2048*j+1024*u}")
        for v in range(4):
            for T in range(2):
                a(f"ds_read_b64_tr_b16 {V(168+16*(j&1)+4*v+2*T,2)}, v{(240 if j<2 else 244)+v} offset:{32768*(j&1)+16384*T}")
    a(f"ds_read_b128 {V(184)}, v2"); a(f"ds_read_b128 {V(188)}, v2 offset:64")
    rdPV(0)
    a("s_cmp_eq_u32 s89, 0")
    a("s_cbranch_scc1 L_A_now")
    stamp(6)
    a(f"s_lshl_b32 s80, {S_Q}, 7"); a(f"s_lshr_b32 s81, {S_WAVE}, 2"); a("s_lshl_b32 s81, s81, 6"); a("s_add_u32 s80, s80, s81")
    a(f"s_and_b32 s81, {S_WAVE}, 3"); a("s_lshl2_add_u32 s80, s81, s80"); a("s_lshl_b32 s80, s80, 13"); a(f"s_lshl_b32 s81, {S_H}, 8"); a("s_add_u32 s80, s80, s81")
    a("v_lshlrev_b32 v4, 13, v5"); a("v_lshl_add_u32 v4, v6, 4, v4")
    for e in range(4):
        a(f"buffer_load_dwordx4 {V(40+4*e)}, v4, {SB}, s80 offen nt")
        if e < 3: a(f"s_add_u32 s80, s80, {16*8192}")
    a(f"s_lshl_b32 s80, {S_H}, 7"); a(f"s_add_u32 s80, s80, {S_WAVE}"); a("s_lshl_b32 s80, s80, 10"); a(f"s_lshl_b32 s81, {S_Q}, 8"); a("s_add_u32 s80, s80, s81")
    a("v_lshlrev_b32 v4, 15, v5"); a("v_lshl_add_u32 v4, v6, 4, v4")
    for e in range(4):
        a(f"buffer_load_dwordx4 {V(56+4*e)}, v4, {SC}, s80 offen nt")
        if e < 3: a("s_add_u32 s80, s80, 8192")
    a("s_waitcnt lgkmcnt(10)")
    for u in range(2):
        for v in range(5):
            acc = 200 + 16*u + 4*v if v < 4 else 232 + 4*u
            a(f"v_pk_mul_f32 {V(acc,2)}, {V(acc,2)}, {V(184+4*u,2)}"); a(f"v_pk_mul_f32 {V(acc+2,2)}, {V(acc+2,2)}, {V(186+4*u,2)}")
    a.label("L_A_now")
    for j in range(4):
        a("s_waitcnt lgkmcnt(0)")
        if j < 3: rdPV(j+1)
        for u in range(2):
            pa = 152 + 8*(j&1) + 4*u
            for v in range(4):
                acc = 200 + 16*u + 4*v
                a(f"v_mfma_f32_16x16x32_bf16 {V(acc)}, {V(pa)}, {V(168+16*(j&1)+4*v)}, {V(acc)}")
            a(f"v_mfma_f32_16x16x32_bf16 {V(232+4*u)}, {V(pa)}, {V(248)}, {V(232+4*u)}")
    a("s_cmp_eq_u32 s89, 1")
    a("s_cbranch_scc1 L_A_pub")
    a("s_mov_b32 s89, 1")
    a("s_barrier")
    stamp(4)
    a(f"s_cmp_ge_u32 {S_WAVE}, 4")
    a("s_cbranch_scc1 L_A_nost")
    for e in range(32):
        a(f"s_waitcnt vmcnt({31-e})")
        a(f"ds_write_b128 v252, {V(8+4*e)} offset:{1024*e}")
    a("s_waitcnt lgkmcnt(0)")
    a("s_barrier")
    stamp(5)
    a("s_branch L_A_ld_loop")
    a.label("L_A_nost")
    a("s_barrier")
    stamp(5)
    a("s_branch L_A_qk_loop")
    a.label("L_A_pub")
    a(f"ds_read_b128 {V(184)}, v2 offset:128"); a(f"ds_read_b128 {V(188)}, v2 offset:192")
    a("v_lshlrev_b32 v4, 20, v5"); a("v_lshl_add_u32 v4, v6, 4, v4")
    a(f"s_lshr_b32 s80, {S_WAVE}, 1"); a("s_lshl_b32 s80, s80, 16"); a(f"s_and_b32 s81, {S_IDX}, 7"); a("s_lshl_b32 s81, s81, 13"); a("s_add_u32 s80, s80, s81")
    a(f"s_lshr_b32 s81, {S_IDX}, 3"); a("s_lshl_b32 s81, s81, 9"); a("s_add_u32 s80, s80, s81"); a(f"s_and_b32 s81, {S_WAVE}, 1"); a("s_lshl_b32 s81, s81, 8")
    a("s_add_u32 s80, s80, s81"); a(f"s_add_u32 s80, s80, {PART}")
    for k in range(8): a(f"v_mov_b32 v{11+4*k}, {S_TAG}")
    for k in range(8): a(f"v_rcp_f32 v{176+k}, v{232+k}")
    for k in range(8): a(f"v_log_f32 v{10+4*k}, v{232+k}")
    a("s_waitcnt lgkmcnt(0)")
    for u in range(2):
        for v in range(4):
            acc = 200 + 16*u + 4*v
            a(f"v_pk_mul_f32 {V(acc,2)}, {V(acc,2)}, {V(176+4*u,2)}"); a(f"v_pk_mul_f32 {V(acc+2,2)}, {V(acc+2,2)}, {V(178+4*u,2)}")
        for r in range(4):
            k = 4*u + r; b = 200 + 16*u + r
            a(f"v_cvt_pk_bf16_f32 v{8+4*k}, v{b}, v{b+4}"); a(f"v_cvt_pk_bf16_f32 v{9+4*k}, v{b+8}, v{b+12}")
            a(f"v_add_f32 v{10+4*k}, v{10+4*k}, v{184+k}")
            a(f"buffer_store_dwordx4 {V(8+4*k)}, v4, {WS}, s80 offen sc1")
            if k < 7: a(f"s_add_u32 s80, s80, {(13 if r == 3 else 1) * 262144}")
    stamp(7)
    a(f"s_lshl_b32 s80, {S_IDX}, 16"); a(f"s_lshl_b32 s81, {S_WAVE}, 13"); a("s_add_u32 s80, s80, s81"); a(f"s_add_u32 s80, s80, {PART}"); a("s_add_u32 s81, s80, 4096")
    a("v_and_b32 v2, 31, v1"); a("v_lshlrev_b32 v2, 3, v2"); a("v_lshrrev_b32 v3, 5, v1"); a("v_lshl_add_u32 v2, v3, 2, v2")
    a(f"s_mul_i32 s82, {S_WAVE}, 288"); a("v_add_u32 v240, s82, v2")
    a("v_and_b32 v2, 7, v1"); a("v_mul_u32_u24 v3, 288, v2"); a("v_lshl_add_u32 v3, v5, 3, v3"); a(f"s_lshl_b32 s82, {S_WAVE}, 5"); a("v_add_u32 v241, s82, v3")
    a("v_lshlrev_b32 v3, 7, v5"); a("v_lshl_add_u32 v3, v2, 4, v3"); a(f"s_lshl_b32 s82, {S_WAVE}, 12"); a(f"s_add_u32 s82, s82, {LA_R4}"); a("v_add_u32 v242, s82, v3")
    a("v_lshlrev_b32 v243, 4, v0"); a(f"v_add_u32 v243, {LA_R4}, v243")
    a("v_lshrrev_b32 v3, 3, v0"); a("v_lshlrev_b32 v3, 9, v3"); a("v_lshl_add_u32 v244, v2, 4, v3")
    a("s_waitcnt vmcnt(0)")
    perm16(136, 40)
    perm16(8, 56)
    a("s_barrier")
    stamp(8)
    gather([f"buffer_load_dwordx4 {V(72+4*e)}, v7, {WS}, s{80+(e>>2)} offen offset:{1024*(e&3)} sc1" for e in range(8)], [75+4*e for e in range(8)])
    stamp(9)
    a("v_max3_f32 v2, v74, v78, v82"); a("v_max3_f32 v2, v2, v86, v90"); a("v_max3_f32 v2, v2, v94, v98"); a("v_max_f32 v2, v2, v102")
    a("v_mov_b32 v3, v2"); a("v_permlane32_swap_b32 v2, v3"); a("v_max_f32 v2, v2, v3")
    for e in range(8): a(f"v_sub_f32 v{74+4*e}, v{74+4*e}, v2")
    for e in range(8): a(f"v_exp_f32 v{74+4*e}, v{74+4*e}")
    for e in range(8):
        g = 72 + 4*e
        a(f"v_lshlrev_b32 v104, 16, v{g}"); a(f"v_and_b32 v105, 0xffff0000, v{g}"); a(f"v_lshlrev_b32 v106, 16, v{g+1}"); a(f"v_and_b32 v107, 0xffff0000, v{g+1}")
        if e == 0:
            a(f"v_pk_mul_f32 v[108:109], v[104:105], {V(g+2,2)} op_sel_hi:[1,0]"); a(f"v_pk_mul_f32 v[110:111], v[106:107], {V(g+2,2)} op_sel_hi:[1,0]")
        else:
            a(f"v_pk_fma_f32 v[108:109], v[104:105], {V(g+2,2)}, v[108:109] op_sel_hi:[1,0,1]"); a(f"v_pk_fma_f32 v[110:111], v[106:107], {V(g+2,2)}, v[110:111] op_sel_hi:[1,0,1]")
            a(f"v_add_f32 v74, v74, v{g+2}")
    a("v_mov_b32 v3, v74"); a("v_permlane32_swap_b32 v74, v3"); a("v_add_f32 v74, v74, v3"); a("v_rcp_f32 v74, v74")
    a("v_permlane32_swap_b32 v108, v110"); a("v_permlane32_swap_b32 v109, v111")
    a("v_add_f32 v108, v108, v110"); a("v_add_f32 v109, v109, v111")
    a("v_mul_f32 v108, v108, v74"); a("v_mul_f32 v109, v109, v74")
    a("v_cvt_pk_bf16_f32 v108, v108, v109")
    a(f"ds_write_b32 v240, v108 offset:{LA_ACT}")
    a("s_waitcnt lgkmcnt(0)")
    a("s_barrier")
    a(f"ds_read_b64 v[76:77], v241 offset:{LA_ACT}")
    a(f"s_lshl_b32 s80, {S_H}, 14"); a(f"s_add_u32 s80, s80, {CTX}"); a(f"s_lshl_b32 s81, {S_Q}, 7"); a("s_add_u32 s81, s81, s80")
    a(f"v_mov_b32 v71, {S_TAG}")
    a("s_waitcnt lgkmcnt(0)")
    skip = gemm128(136, 76, 160, LA_R4, 242, [512*i for i in range(8)], 243, 64)
    a(f"buffer_store_dwordx4 {V(68)}, v244, {WS}, s81 offen sc1")
    a.label(skip)
    stamp(10)
    a(f"s_lshl_b32 s81, {S_WAVE}, 11"); a("s_add_u32 s80, s80, s81")
    a("v_lshlrev_b32 v2, 9, v5"); a("v_lshl_add_u32 v2, v6, 4, v2")
    gather([f"buffer_load_dwordx4 {V(80+4*z)}, v2, {WS}, s80 offen offset:{256*z} sc1" for z in range(2)], [83, 87])
    stamp(11)
    unpack24(80, 83); unpack24(84, 87)
    a("v_pk_add_f32 v[80:81], v[80:81], v[84:85]"); a("v_pk_add_f32 v[82:83], v[82:83], v[86:87]")
    for k in range(4): a(f"v_add_f32_dpp v{72+k}, v{80+k}, v{80+k} row_ror:8 {DPPM}")
    a("v_cvt_pk_bf16_f32 v76, v72, v73"); a("v_cvt_pk_bf16_f32 v77, v74, v75")
    a(f"s_mov_b32 s88, {S_H}")

    a.label("L_S5")
    LR5 = 65536
    a("v_and_b32 v2, 7, v1"); a("v_lshlrev_b32 v3, 9, v5"); a("v_lshl_add_u32 v3, v2, 6, v3")
    a(f"s_lshl_b32 s82, {S_WAVE}, 12"); a(f"s_add_u32 s82, s82, {LR5}"); a("v_add_u32 v242, s82, v3")
    a("v_lshlrev_b32 v243, 4, v0"); a(f"v_add_u32 v243, {LR5}, v243")
    a("v_bfe_u32 v2, v0, 2, 3"); a("v_lshlrev_b32 v2, 15, v2"); a("v_bfe_u32 v3, v0, 5, 2"); a("v_lshl_add_u32 v2, v3, 13, v2")
    a("v_bfe_u32 v3, v0, 7, 1"); a("v_lshl_add_u32 v2, v3, 12, v2"); a("v_and_b32 v3, 3, v0"); a("v_lshl_add_u32 v244, v3, 4, v2")
    a(f"s_lshl_b32 s80, {S_Q}, 18"); a("s_lshl_b32 s81, s88, 6"); a("s_add_u32 s80, s80, s81"); a(f"s_add_u32 s80, s80, {FIN}")
    a(f"v_mov_b32 v71, {S_TAG}")
    skip = gemm128(8, 76, 160, LR5, 242, [2048*(i>>2) + 16*(i&3) for i in range(8)], 243, 64)
    a(f"buffer_store_dwordx4 {V(68)}, v244, {WS}, s80 offen sc1")
    a.label(skip)
    stamp(12)
    a(f"s_cmp_lg_u32 {S_WAVE}, 7")
    a("s_cbranch_scc1 L_fin")
    a(f"s_lshl_b32 s80, {S_W}, 12"); a(f"s_add_u32 s80, s80, {FIN}")
    a(f"s_bfe_u32 s81, {S_W}, 0x30003"); a("s_lshl_b32 s81, s81, 10"); a(f"s_lshr_b32 s82, {S_W}, 6"); a("s_lshl_b32 s82, s82, 8"); a("s_add_u32 s81, s81, s82")
    a(f"s_bfe_u32 s82, {S_W}, 0x20001"); a("s_lshl_b32 s82, s82, 6"); a("s_add_u32 s81, s81, s82"); a(f"s_and_b32 s82, {S_W}, 1"); a("s_lshl3_add_u32 s81, s82, s81")
    a("v_and_b32 v3, 3, v1"); a("v_lshlrev_b32 v3, 1, v3"); a("v_lshl_add_u32 v4, v5, 4, v3")
    a(f"v_sub_f32 v2, 1.0, {S_GATE}")
    gather([f"buffer_load_dwordx4 {V(80+4*e)}, v7, {WS}, s80 offen offset:{1024*e} sc1" for e in range(4)], [83+4*e for e in range(4)])
    stamp(13)
    for e in range(4): unpack24(80+4*e, 83+4*e)
    a("v_pk_add_f32 v[80:81], v[80:81], v[84:85]"); a("v_pk_add_f32 v[82:83], v[82:83], v[86:87]")
    a("v_pk_add_f32 v[88:89], v[88:89], v[92:93]"); a("v_pk_add_f32 v[90:91], v[90:91], v[94:95]")
    for k in range(4): a(f"v_mul_f32 v{88+k}, v{88+k}, v2")
    for k in range(4): a(f"v_fmac_f32 v{88+k}, {S_GATE}, v{80+k}")
    a("v_permlane32_swap_b32 v88, v90"); a("v_permlane32_swap_b32 v89, v91")
    a("v_add_f32 v88, v88, v90"); a("v_add_f32 v89, v89, v91")
    a("v_permlane16_swap_b32 v88, v89"); a("v_add_f32 v88, v88, v89")
    a(f"v_add_f32_dpp v88, v88, v88 row_ror:4 {DPPM}"); a(f"v_add_f32_dpp v88, v88, v88 row_ror:8 {DPPM}")
    a("v_cvt_pk_bf16_f32 v88, v88, v88")
    a("s_mov_b32 exec_lo, 0x000f000f"); a("s_mov_b32 exec_hi, 0x000f000f")
    a(f"buffer_store_short v88, v4, {SO}, s81 offen")
    a(f"s_cmp_lg_u32 {S_W}, 0")
    a("s_cbranch_scc1 L_fin")
    a("s_mov_b64 exec, 1")
    a("v_mov_b32 v2, 0")
    a(f"buffer_store_dword v71, v2, {WS}, 0 offen sc1")
    a.label("L_fin")
    if dev:
        a("s_mov_b64 exec, -1")
        stamp(14)
        a(f"s_lshl_b32 s80, {S_W}, 3"); a(f"s_add_u32 s80, s80, {S_WAVE}"); a("s_lshl_b32 s80, s80, 6"); a(f"s_add_u32 s80, s80, {TS}")
        a("v_lshlrev_b32 v2, 2, v1")
        a("s_mov_b64 exec, 0xffff")
        a(f"buffer_store_dword v255, v2, {WS}, s80 offen")
        a(f"s_cmp_lg_u32 {S_WAVE}, 7")
        a("s_cbranch_scc1 L_end")
        srd(SO, "dbg", 256)
        a(f"buffer_atomic_umax v255, v2, {SO}, 0 offen sc1")
    a.label("L_end")
    return a

HEAD = """; gated_mix decode: single persistent kernel, 256 workgroups x 512 threads (generated by work/gen.py)
; @launch grid=(256,1,1) block=(512,1,1) lds=163840
.amdgcn_target "amdgcn-amd-amdhsa--gfx950"
.text
.globl {n}_kernel
.p2align 8
.type {n}_kernel,@function
{n}_kernel:
"""
TAIL = """s_endpgm
.section .rodata,"a"
.p2align 6
.amdhsa_kernel {n}_kernel
  .amdhsa_next_free_vgpr 256
  .amdhsa_next_free_sgpr 102
  .amdhsa_accum_offset 256
  .amdhsa_group_segment_fixed_size 0
  .amdhsa_kernarg_size 120
  .amdhsa_user_sgpr_count 2
  .amdhsa_user_sgpr_kernarg_segment_ptr 1
  .amdhsa_system_sgpr_workgroup_id_x 1
.end_amdhsa_kernel
"""
def full(dev=False, opt=None):
    a = gen(dev, opt)
    return HEAD.format(n=NAME) + a.text() + TAIL.format(n=NAME)

if __name__ == "__main__":
    open("dev.s", "w").write(full(True))
    open("rel.s", "w").write(full(False))
    print("ok")
```

```python
from gen4 import *

def gen_a(L):
    a, o, dev = L["a"], L["o"], L["dev"]
    stamp, stamp_init, sleep, srd, V, check, gather = [L[x] for x in "stamp stamp_init sleep srd V check gather".split()]
    pack24, gate_load, gate_calc, tagwait, xt_publish, xt_load, xt_eval, both = [L[x] for x in "pack24 gate_load gate_calc tagwait xt_publish xt_load xt_eval both".split()]
    QR = 131072
    LA_P, LA_MX, LA_L, LA_CT = QR, QR + 4096, QR + 4608, QR + 8192
    ST3 = o["ST3"]
    def fsw(k): return ((k & 7) << 1) | ((k >> 3) & 1)
    VM, VL, VAL, VMXW, VMXR, VPV, VPW, VST, VPR, VXT = 232, 234, 236, 238, 239, 240, 248, 252, 253, 254
    def srds(warm=False):
        L["ws_tag"]()
        srd(WS, "ws", WSEND); srd(SO, "out", 8192); srd(SB, "wuv", 0x400000); srd(SC, "woa", 0x400000)
        if warm and o["WARM"]:
            def tch(d, p, off): a(f"s_load_dword s{d}, s[{P[p]}:{P[p]+1}], {off}")
            sleep(o["DW"])
            a(f"s_cmp_lg_u32 {S_WAVE}, 4"); a("s_cbranch_scc1 L_W5")
            a(f"s_lshr_b32 s78, {S_K}, 1"); a(f"s_lshl3_add_u32 s78, s78, {S_X}"); a("s_lshl_b32 s78, s78, 20"); a(f"s_add_u32 s78, s78, {3072*256}")
            tch(24, "kc", "s78"); tch(25, "vc", "s78")
            a("s_branch L_W7")
            a.label("L_W5")
            a(f"s_cmp_lg_u32 {S_WAVE}, 5"); a("s_cbranch_scc1 L_W7")
            a(f"s_and_b32 s78, {S_K}, 1"); a("s_lshl_b32 s78, s78, 21"); a(f"s_lshl_b32 s79, {S_X}, 19")
            tch(24, "wqb", "s78"); tch(25, "wuv", "s78"); tch(26, "woa", "s79"); tch(27, "wob", "s79"); tch(28, "out", "0")
            a.label("L_W7")
        stamp_init()
    def common_addr():
        a("v_lshrrev_b32 v2, 2, v1")
        a(f"v_and_b32 v3, 7, v2"); a("v_lshlrev_b32 v3, 1, v3"); a(f"v_lshrrev_b32 v{VPV}, 5, v1"); a(f"v_or_b32 v3, v3, v{VPV}")
        a(f"v_bfe_u32 v{VPV}, v1, 1, 1"); a(f"s_lshl_b32 s80, {S_WAVE}, 3"); a(f"v_add_u32 v{VPV}, s80, v{VPV}"); a(f"v_xor_b32 v3, v3, v{VPV}")
        a("v_lshlrev_b32 v2, 10, v2"); a(f"v_and_b32 v{VPV}, 1, v1"); a(f"v_lshl_add_u32 v2, v{VPV}, 3, v2")
        a(f"v_lshl_add_u32 v{VPV}, v3, 4, v2")
        for v in range(1, 4): a(f"v_xor_b32 v{VPV+v}, {32*v}, v{VPV}")
        for v in range(4): a(f"v_add_u32 v{VPV+4+v}, 0x10000, v{VPV+v}")
        a(f"v_lshlrev_b32 v{VMXR}, 4, v6"); a(f"v_add_u32 v{VMXR}, {LA_MX}, v{VMXR}")
        a(f"v_add_u32 v{VPR}, {LA_P}, v7")
    def vread(i, aa):
        for v in range(4):
            for T in range(2):
                a(f"ds_read_b64_tr_b16 {V(168+16*aa+4*v+2*T,2)}, v{VPV+4*aa+v} offset:{32768*T+16384*(i&1)}")
    def kread(i, s): a(f"ds_read_b128 {V(168+4*(s&7))}, v{136+s} offset:{16384*(i&1)}")
    def rescale():
        for u in range(2):
            for x in range(8):
                r = 200 + 16*u + 2*x
                a(f"v_pk_mul_f32 {V(r,2)}, {V(r,2)}, {V(VAL,2)} op_sel:[0,{u}] op_sel_hi:[1,{u}]")
    def newmax(i, u):
        m = 160 + 4*u
        a(f"v_max3_f32 v{2+u}, v{m}, v{m+1}, v{m+2}")
        a(f"v_max_f32 v{2+u}, v{2+u}, v{m+3}" if i == 0 else f"v_max3_f32 v{2+u}, v{2+u}, v{m+3}, v{VM+u}")
    def alpha(i):
        for u in range(2):
            if i: a(f"v_sub_f32 v{VAL+u}, v{VM+u}, v{2+u}")
            a(f"v_mov_b32 v{VM+u}, v{2+u}")
        if i:
            for u in range(2): a(f"v_exp_f32 v{VAL+u}, v{VAL+u}")
    T_PS, T_PG, T_CS, T_CG, T_CTW, T_CTR, T_FIN, T_WO, T_UV = 136, 137, 138, 139, 140, 141, 142, 144, 148
    tail = []
    t = tail.append
    t("v_lshrrev_b32 v2, 1, v6"); t(f"v_mul_u32_u24 v{T_PS}, 49152, v2"); t("v_and_b32 v2, 1, v1"); t("v_lshl_add_u32 v3, v5, 1, v2"); t(f"v_lshl_add_u32 v{T_PS}, v3, 4, v{T_PS}")
    t(f"s_mul_i32 s80, {S_X}, {16*49152}"); t(f"s_lshl_b32 s81, {S_WAVE}, 7"); t("s_add_u32 s80, s80, s81"); t(f"s_add_u32 s82, s80, {PART}")
    t(f"s_mul_i32 s81, {S_K}, 3072"); t("s_add_u32 s80, s82, s81"); t(f"s_add_u32 s81, s80, {8*49152}")
    t(f"s_mul_i32 s83, {S_K}, 49152"); t("s_add_u32 s82, s82, s83"); t("s_add_u32 s83, s82, 24576")
    t("v_lshrrev_b32 v3, 3, v1"); t(f"v_mul_u32_u24 v{T_PG}, 3072, v3"); t(f"v_lshl_add_u32 v{T_PG}, v4, 4, v{T_PG}")
    t(f"v_lshlrev_b32 v{T_CS}, 14, v2"); t("v_bfe_u32 v2, v1, 1, 2"); t("v_lshl_add_u32 v2, v5, 2, v2"); t(f"v_lshl_add_u32 v{T_CS}, v2, 4, v{T_CS}")
    t(f"s_lshl_b32 s84, {S_K}, 15"); t(f"s_lshl_b32 s85, {S_X}, 11"); t("s_add_u32 s84, s84, s85"); t(f"s_lshl_b32 s85, {S_WAVE}, 8"); t("s_add_u32 s84, s84, s85"); t(f"s_add_u32 s84, s84, {CC}")
    t(f"v_lshlrev_b32 v{T_CG}, 11, v4"); t(f"v_lshl_add_u32 v{T_CG}, v3, 4, v{T_CG}")
    t(f"s_lshl_b32 s85, {S_H}, 14"); t(f"s_lshl_b32 s86, {S_WAVE}, 9"); t("s_add_u32 s85, s85, s86"); t(f"s_add_u32 s85, s85, {CC}")
    t("v_lshlrev_b32 v2, 7, v5"); t("v_lshl_add_u32 v2, v4, 4, v2"); t(f"s_lshl_b32 s86, {S_WAVE}, 10"); t(f"s_add_u32 s86, s86, {LA_CT}"); t(f"v_add_u32 v{T_CTW}, s86, v2")
    t("v_lshrrev_b32 v3, 3, v6"); t("v_lshl_add_u32 v2, v3, 11, v2"); t(f"v_add_u32 v{T_CTR}, {LA_CT}, v2")
    t("v_lshl_add_u32 v3, v3, 2, v5"); t(f"v_mul_u32_u24 v{T_FIN}, 0x3000, v3"); t(f"v_lshl_add_u32 v{T_FIN}, v4, 4, v{T_FIN}")
    t(f"s_and_b32 s86, {S_K}, 1"); t(f"s_lshl3_add_u32 s86, s86, {S_WAVE}"); t("s_mul_i32 s86, s86, 0x18000"); t(f"s_lshl_b32 s87, {S_X}, 10"); t("s_add_u32 s86, s86, s87")
    t(f"s_lshr_b32 s87, {S_K}, 1"); t("s_lshl_b32 s87, s87, 7"); t("s_add_u32 s86, s86, s87"); t(f"s_add_u32 s86, s86, {FIN}")
    t("v_bfe_u32 v2, v1, 2, 3"); t("v_lshlrev_b32 v2, 1, v2"); t("v_bfe_u32 v3, v1, 1, 1"); t(f"s_lshl_b32 s87, {S_WAVE}, 2"); t(f"v_add_u32 v{T_WO}, s87, v3"); t(f"v_xor_b32 v2, v2, v{T_WO}")
    t(f"v_lshrrev_b32 v{T_WO}, 2, v1"); t(f"v_lshlrev_b32 v{T_WO}, 9, v{T_WO}"); t(f"v_lshl_add_u32 v{T_WO}, v2, 4, v{T_WO}"); t("v_and_b32 v2, 1, v1"); t(f"v_lshl_add_u32 v{T_WO}, v2, 3, v{T_WO}")
    t(f"v_xor_b32 v{T_WO+2}, 32, v{T_WO}"); t(f"v_add_u32 v{T_WO+1}, 0x10000, v{T_WO}"); t(f"v_add_u32 v{T_WO+3}, 0x10000, v{T_WO+2}")
    tail_ld = []
    t = tail_ld.append
    t("v_bfe_u32 v2, v1, 3, 2"); t("v_lshlrev_b32 v2, 1, v2"); t("v_bfe_u32 v3, v1, 1, 1"); t("v_or_b32 v2, v2, v3"); t("v_lshlrev_b32 v2, 4, v2")
    t("v_bfe_u32 v3, v1, 2, 2"); t("v_lshl_add_u32 v3, v5, 3, v3"); t("v_lshl_add_u32 v2, v3, 7, v2"); t("v_and_b32 v3, 1, v1"); t("v_lshl_add_u32 v2, v3, 3, v2")
    t(f"s_lshl_b32 s87, {S_WAVE}, 15"); t(f"v_add_u32 v{T_UV}, s87, v2")
    for x in range(1, 4): t(f"v_xor_b32 v{T_UV+x}, {32*x}, v{T_UV}")

    def pv(i, qk, extra=None):
        for x in range(4): a(f"ds_read_b128 {V(152+4*x)}, v{VPR} offset:{1024*x}")
        nl = 0
        if i == 3:
            for u in range(2): a(f"ds_read_b128 {V(128+4*u)}, v{VMXR} offset:{LA_L-LA_MX+256*u}")
            nl = 2
        if qk and i: rescale()
        ex = list(extra or [])
        per = (len(ex) + 13) // 14
        pre = qk and (i < 2 or (i == 2 and ST3))
        for aa in range(2):
            for u in range(2):
                a(f"s_waitcnt lgkmcnt({3 - 2*aa - u + nl + (4 if (pre and aa and u) else 0)})")
                for v in range(4):
                    acc = 200 + 16*u + 4*v
                    a(f"v_mfma_f32_16x16x32_bf16 {V(acc)}, {V(168+16*aa+4*v)}, {V(152+8*aa+4*u)}, {'0' if (i == 0 and aa == 0) else V(acc)}")
                    if pre and aa == 1 and u == 0: kread(i+1, v)
                    for _ in range(per):
                        if ex: a(ex.pop(0))
        for x in ex: a(x)

    a.label("L_A")
    a.c("==== A role")
    a(f"s_cmp_ge_u32 {S_WAVE}, 4")
    a("s_cbranch_scc1 L_A_qk")
    a(f"s_lshl_b32 s86, {S_X}, 22"); a(f"s_lshl_b32 s79, {S_K}, 18"); a("s_add_u32 s86, s86, s79"); a(f"s_lshl_b32 s79, {S_WAVE}, 14"); a("s_add_u32 s86, s86, s79")
    a("s_lshl_b32 s79, s79, 1"); a("s_mov_b32 m0, s79"); a(f"v_add_u32 v{VST}, s79, v7")
    for e in range(16): a(f"v_xor_b32 v{136+e}, {fsw(e)*16}, v7")
    common_addr()
    a("s_waitcnt lgkmcnt(0)")
    srd(SA, "ckv", 0x2000000)
    srds()
    sleep(o["DA"])
    Q = []
    def vm(name, line): a(line); Q.append(name)
    def wait(name):
        n = len(Q) - 1 - max(i for i, x in enumerate(Q) if x == name)
        a(f"s_waitcnt vmcnt({min(n, 63)})")
    st = dict(i=0, u=0, w=0)
    def ck(n):
        for _ in range(n):
            i = st["i"]
            if i >= 64: return
            st["i"] += 1
            e = i & 15
            W = o["WA0"] if i < o["NA0"] else o["WA1"]
            if i >= W and W < 64: a(f"s_waitcnt vmcnt({W-1})")
            if i < 32: vm(f"c{i}", f"buffer_load_dwordx4 v{136+e}, {SA}, s86 offen offset:{1024*(e&3)} nt lds")
            else: vm(f"c{i}", f"buffer_load_dwordx4 {V(8+4*(i-32))}, v{136+e}, {SA}, s86 offen offset:{1024*(e&3)} nt")
            if (e & 3) == 3 and i < 63:
                a(f"s_add_u32 s86, s86, {4096 if e < 15 else 53248}")
                if i < 31: a("s_add_u32 m0, m0, 4096")
    def uv(n):
        for _ in range(n):
            e = st["u"]
            if e >= 16: return
            st["u"] += 1
            vm(f"u{e}", f"buffer_load_dwordx4 {V(8+4*e)}, v{136+(e&1)}, {SB}, s86 offen{'' if o['WNT'] == 0 else ' nt'}")
            if e < 15: a("s_add_u32 s86, s86, 65536")
    def wo(n):
        for _ in range(n):
            e = st["w"]
            if e >= 8: return
            st["w"] += 1
            vm(f"w{e}", f"buffer_load_dwordx4 {V(72+4*e)}, v{138+(e&3)}, {SC}, s87 offen offset:{2048*(e&1)} nt")
            if e & 1 and e < 7: a("s_add_u32 s87, s87, 4096")
    def staging(i):
        for e in range(16):
            wait(f"c{16*i+e}")
            a(f"ds_write_b128 v{VST}, {V(8+64*(i-2)+4*e)} offset:{16384*(i&1)+1024*e}")
        a("s_waitcnt lgkmcnt(0)")
    stamp(0)
    ck(32 + o["PRE"])
    tagwait()
    stamp(1)
    if o["XB"]: a("s_barrier")
    xt_load(VXT, VXT); Q.append("xt")
    ck(o["N0"])
    wait("c15")
    stamp(2)
    a("s_barrier")
    ck(64)
    a("v_bfe_u32 v2, v1, 4, 1"); a("v_lshlrev_b32 v2, 1, v2"); a("v_xor_b32 v2, v2, v4"); a("v_lshlrev_b32 v2, 4, v2"); a("v_lshrrev_b32 v3, 3, v1")
    a("v_lshl_add_u32 v136, v3, 13, v2"); a("v_xor_b32 v137, 64, v136")
    a(f"s_lshl_b32 s86, {S_WAVE}, 20"); a(f"s_lshl_b32 s78, {S_X}, 10"); a("s_add_u32 s86, s86, s78"); a(f"s_lshr_b32 s78, {S_K}, 1"); a("s_lshl_b32 s79, s78, 7"); a("s_add_u32 s86, s86, s79")
    a("v_lshrrev_b32 v2, 5, v1"); a("v_lshlrev_b32 v3, 1, v2"); a("v_xor_b32 v3, v3, v1"); a("v_and_b32 v3, 31, v3"); a("v_lshlrev_b32 v3, 4, v3"); a("v_lshl_add_u32 v138, v2, 10, v3")
    for x in range(1, 4): a(f"v_xor_b32 v{138+x}, {64*x}, v138")
    a(f"s_lshl_b32 s87, {S_X}, 19"); a("s_lshl_b32 s78, s78, 16"); a("s_add_u32 s87, s87, s78"); a(f"s_lshl_b32 s78, {S_WAVE}, 14"); a("s_add_u32 s87, s87, s78")
    a(f"s_and_b32 s78, {S_K}, 1"); a("s_lshl_b32 s78, s78, 9"); a("s_add_u32 s87, s87, s78")
    for i in range(4):
        if i == 1: staging(2); uv(o["W1"])
        if i == 2:
            if ST3: staging(3)
            uv(16)
            if ST3: wo(o["W2"])
        if i == 3: wo(8)
        vread(i, 0); vread(i, 1)
        if i == 0: a("s_barrier")
        a("s_barrier")
        for u in range(2): a(f"ds_read_b128 {V(160+4*u)}, v{VMXR} offset:{256*u}")
        for u in range(2):
            a(f"s_waitcnt lgkmcnt({1-u})"); newmax(i, u)
        alpha(i)
        if i: rescale()
        if i == 0: wait("c31")
        if i == 3: xt_eval(VXT)
        a("s_barrier")
        stamp(3+i)
        pv(i, False, (tail + tail_ld) if i == 3 else None)
        if i == 0 or (i == 1 and ST3): a("s_barrier")
        if i == 2 and not ST3:
            staging(3)
            a("s_barrier")
    a("s_branch L_A_pub")

    a.label("L_A_qk")
    if o["PRIO"]: a("s_setprio 3")
    a(f"s_sub_u32 s87, {S_WAVE}, 4"); a("s_lshl_b32 s80, s87, 15")
    a("v_lshlrev_b32 v2, 1, v4"); a("v_lshrrev_b32 v3, 3, v6"); a("v_or_b32 v2, v2, v3"); a("v_lshlrev_b32 v2, 4, v2")
    a("v_lshl_add_u32 v2, v6, 10, v2"); a("v_lshl_add_u32 v2, v5, 8, v2"); a("v_add_u32 v136, s80, v2"); a(f"v_add_u32 v200, {QR}, v2")
    a("s_waitcnt lgkmcnt(0)")
    srd(SX, "x", 8192); srd(SG, "gate", 1024)
    a(f"s_cmp_lg_u32 {S_WAVE}, 7"); a("s_cbranch_scc1 L_A_ng")
    gate_load(72)
    a.label("L_A_ng")
    srds(True)
    for s in range(1, 16): a(f"v_xor_b32 v{136+s}, {16*s}, v136"); a(f"v_xor_b32 v{200+s}, {16*s}, v200")
    common_addr()
    a("v_lshrrev_b32 v2, 1, v1"); a("s_and_b32 s80, s87, 1"); a("v_xor_b32 v2, s80, v2"); a("v_lshlrev_b32 v2, 4, v2"); a("v_and_b32 v3, 1, v1"); a("v_lshl_add_u32 v2, v3, 3, v2")
    a("s_lshl_b32 s81, s87, 13"); a(f"s_add_u32 s81, s81, {QR}"); a("v_add_u32 v216, s81, v2")
    for e in range(1, 8): a(f"v_xor_b32 v{216+e}, {32*e}, v216")
    a("v_lshrrev_b32 v2, 5, v1"); a(f"v_lshl_add_u32 v2, v2, 8, v{VMXR}"); a("s_lshl_b32 s81, s87, 2"); a(f"v_add_u32 v{VMXW}, s81, v2")
    a("s_lshr_b32 s81, s87, 1"); a("s_lshl_b32 s81, s81, 11"); a("s_lshl3_add_u32 s81, s80, s81"); a(f"v_add_u32 v{VPW}, s81, v{VPR}")
    a(f"s_lshl_b32 s80, {S_X}, 16"); a("s_lshl_b32 s81, s87, 14"); a("s_add_u32 s80, s80, s81"); a(f"s_add_u32 s80, s80, {QABS}")
    for k in range(1, 4): a(f"s_add_u32 s{80+k}, s80, {4096*k}")
    tagwait()
    xt_publish()
    a(f"s_cmp_lg_u32 {S_WAVE}, 7"); a("s_cbranch_scc1 L_A_ng2")
    a("s_waitcnt vmcnt(0)")
    gate_calc(72)
    a.label("L_A_ng2")
    stamp(0)
    sleep(o["DQ"])
    if o["XB"] == 2: a("s_barrier")
    xt_load(VXT, VXT)
    ql = [f"buffer_load_dwordx4 {V(8+4*e)}, v7, {WS}, s{80+(e>>2)} offen offset:{1024*(e&3)}" for e in range(16)]
    for l in ql: a(l + ["", " sc1", " sc1 nt", " nt"][o["QSC"]])
    stamp(1)
    if o["XB"] == 1: a("s_barrier")
    for gq in range(4):
        a(f"s_waitcnt vmcnt({12-4*gq})")
        check([l + " sc1" for l in ql[4*gq:4*gq+4]], [11+16*gq+4*e for e in range(4)])
        for e in range(4*gq, 4*gq+4): a(f"ds_write_b64 v{216+(e>>1)}, {V(8+4*e,2)} offset:{1024*(e>>1)+512*(e&1)}")
    xt_eval(VXT)
    a("s_waitcnt lgkmcnt(0)")
    stamp(2)
    a("s_barrier")
    for i in range(4):
        if i == 0:
            def rd(s):
                kread(0, s)
                for u in range(2): a(f"ds_read_b128 {V(8+64*u+4*s)}, v{200+s} offset:{16384*u}")
            D, per, done = 5, 3, 0
        else:
            def rd(s): kread(i, s)
            D, per, done = 8, 1, (4 if (i < 3 or ST3) else 0)
        for s in range(done, D): rd(s)
        for s in range(16):
            a(f"s_waitcnt lgkmcnt({per*min(D-1, 15-s)})")
            for u in range(2):
                a(f"v_mfma_f32_16x16x32_bf16 {V(152+4*u)}, {V(168+4*(s&7))}, {V(8+64*u+4*s)}, {'0' if s==0 else V(152+4*u)}")
            if s + D < 16: rd(s+D)
        if i == 0: a("s_barrier")
        for u in range(2):
            b0 = 152 + 4*u
            a(f"v_max3_f32 v{2+u}, v{b0}, v{b0+1}, v{b0+2}"); a(f"v_max_f32 v{2+u}, v{2+u}, v{b0+3}")
        a("v_permlane32_swap_b32 v2, v3"); a("v_max_f32 v2, v2, v3")
        a("v_mov_b32 v3, v2"); a("v_permlane16_swap_b32 v2, v3"); a("v_max_f32 v2, v2, v3")
        a(f"ds_write_b32 v{VMXW}, v2")
        vread(i, 0)
        a("s_waitcnt lgkmcnt(8)")
        a("s_barrier")
        for u in range(2): a(f"ds_read_b128 {V(160+4*u)}, v{VMXR} offset:{256*u}")
        vread(i, 1)
        for u in range(2):
            a(f"s_waitcnt lgkmcnt(9)")
            newmax(i, u)
            b0 = 152 + 4*u
            for r in range(4): a(f"v_sub_f32 v{b0+r}, v{b0+r}, v{2+u}")
            for r in range(4): a(f"v_exp_f32 v{b0+r}, v{b0+r}")
            for x in range(2): a(f"v_cvt_pk_bf16_f32 v{160+4*u+x}, v{b0+2*x}, v{b0+2*x+1}")
            a(f"ds_write_b64 v{VPW}, {V(160+4*u,2)} offset:{1024*u}")
        alpha(i)
        for u in range(2):
            b0 = 152 + 4*u
            a(f"v_pk_add_f32 {V(b0,2)}, {V(b0,2)}, {V(b0+2,2)}")
        for u in range(2): a(f"v_add_f32 v{(152+4*u) if i else (VL+u)}, v{152+4*u}, v{153+4*u}")
        if i:
            for u in range(2): a(f"v_fma_f32 v{VL+u}, v{VL+u}, v{VAL+u}, v{152+4*u}")
        if i == 3:
            a(f"v_permlane32_swap_b32 v{VL}, v{VL+1}"); a(f"v_add_f32 v2, v{VL}, v{VL+1}")
            a("v_mov_b32 v3, v2"); a("v_permlane16_swap_b32 v2, v3"); a("v_add_f32 v2, v2, v3")
            a(f"ds_write_b32 v{VMXW}, v2 offset:{LA_L-LA_MX}")
        a("s_waitcnt lgkmcnt(0)")
        a("s_barrier")
        stamp(3+i)
        pv(i, True, tail if i == 3 else None)
        if i == 0 or (i == 1 and ST3) or (i == 2 and not ST3): a("s_barrier")

    a.label("L_A_pub")
    a("s_waitcnt lgkmcnt(0)")
    for u in range(2):
        a(f"v_pk_add_f32 {V(128+4*u,2)}, {V(128+4*u,2)}, {V(130+4*u,2)}")
    for u in range(2): a(f"v_add_f32 v{128+4*u}, v{128+4*u}, v{129+4*u}")
    for u in range(2): a(f"v_rcp_f32 v{VAL+u}, v{128+4*u}")
    for u in range(2): a(f"v_log_f32 v{114+12*u}, v{128+4*u}")
    for k in range(6): a(f"v_mov_b32 v{107+4*k}, {S_TAG}")
    for u in range(2): a(f"v_add_f32 v{114+12*u}, v{114+12*u}, v{VM+u}")
    a("s_nop 7")
    def pub(m):
        for u in range(2):
            for x in range(8):
                r = 200 + 16*u + 2*x
                a(f"v_pk_mul_f32 {V(r,2)}, {V(r,2)}, {V(VAL,2)} op_sel:[0,{u}] op_sel_hi:[1,{u}]")
            for x in range(8):
                r = 200 + 16*u + 2*x
                a(f"v_cvt_pk_bf16_f32 v{104+12*u+4*(x//3)+x%3}, v{r}, v{r+1}")
                if x in (2, 5, 7): a(f"buffer_store_dwordx4 {V(104+12*u+4*(x//3))}, v{T_PS}, {WS}, s{80+u} offen offset:{1024*(x//3)}{m}")
    both(pub)
    stamp(7)
    pg = [f"buffer_load_dwordx4 {V(200+12*z+4*t)}, v{T_PG}, {WS}, s{82+z} offen offset:{1024*t} sc1" for z in range(2) for t in range(3)]
    a(f"s_cmp_ge_u32 {S_WAVE}, 4")
    a("s_cbranch_scc1 L_A_pg")
    a("s_waitcnt vmcnt(14)")
    for e in range(16): a(f"ds_write_b128 v{VST}, {V(8+4*e)} offset:{1024*e}")
    a("s_waitcnt lgkmcnt(0)")
    for s in range(4):
        for x in range(4):
            for T in range(2): a(f"ds_read_b64_tr_b16 {V(8+16*s+4*x+2*T,2)}, v{T_UV+x} offset:{4096*s+512*T}")
    a("s_waitcnt vmcnt(6)")
    for e in range(8): a(f"ds_write_b128 v{VST}, {V(72+4*e)} offset:{1024*e}")
    a.label("L_A_pg")
    gather(pg, [203+4*k for k in range(6)])
    stamp(8)
    a("v_max_f32 v2, v210, v222")
    a(f"v_max_f32_dpp v2, v2, v2 row_ror:8 {DPPM}")
    def unp(z, x):
        g = 200 + 12*z + 4*(x//3) + x%3
        a(f"v_lshlrev_b32 v{160+16*z+2*x}, 16, v{g}"); a(f"v_and_b32 v{161+16*z+2*x}, 0xffff0000, v{g}")
    U = [(z, x) for z in range(2) for x in range(8)]
    def un(n):
        for _ in range(n):
            if U: unp(*U.pop(0))
    a("v_mov_b32 v3, v2"); un(1); a("v_permlane16_swap_b32 v2, v3"); a("v_max_f32 v2, v2, v3")
    a("v_mov_b32 v3, v2"); un(1); a("v_permlane32_swap_b32 v2, v3"); a("v_max_f32 v2, v2, v3")
    a("v_sub_f32 v224, v210, v2"); a("v_sub_f32 v225, v222, v2"); a("v_exp_f32 v224, v224"); a("v_exp_f32 v225, v225"); un(1)
    a("v_add_f32 v2, v224, v225"); un(1)
    a(f"v_add_f32_dpp v2, v2, v2 row_ror:8 {DPPM}")
    a("v_mov_b32 v3, v2"); un(1); a("v_permlane16_swap_b32 v2, v3"); a("v_add_f32 v2, v2, v3")
    a("v_mov_b32 v3, v2"); un(1); a("v_permlane32_swap_b32 v2, v3"); a("v_add_f32 v2, v2, v3")
    a("v_rcp_f32 v2, v2"); un(2)
    a("v_pk_mul_f32 v[224:225], v[224:225], v[2:3] op_sel_hi:[1,0]")
    un(16)
    for x in range(8): a(f"v_pk_mul_f32 {V(160+2*x,2)}, {V(160+2*x,2)}, v[224:225] op_sel_hi:[1,0]")
    for x in range(8): a(f"v_pk_fma_f32 {V(160+2*x,2)}, {V(176+2*x,2)}, v[224:225], {V(160+2*x,2)} op_sel:[0,1,0] op_sel_hi:[1,1,1]")
    for x in range(8): a(f"v_permlane32_swap_b32 v{160+x}, v{168+x}")
    for x in range(4): a(f"v_pk_add_f32 {V(160+2*x,2)}, {V(160+2*x,2)}, {V(168+2*x,2)}")
    for x in range(4): a(f"v_permlane16_swap_b32 v{160+x}, v{164+x}")
    for x in range(2): a(f"v_pk_add_f32 {V(160+2*x,2)}, {V(160+2*x,2)}, {V(164+2*x,2)}")
    for x in range(4): a(f"v_add_f32_dpp v{164+x}, v{160+x}, v{160+x} row_ror:8 {DPPM}")
    a("v_cvt_pk_bf16_f32 v104, v164, v165"); a("v_cvt_pk_bf16_f32 v105, v166, v167")
    a(f"s_mov_b64 exec, {MN8}")
    a(f"buffer_store_dwordx4 {V(104)}, v{T_CS}, {WS}, s84 offen sc1")
    a("s_mov_b64 exec, -1")
    stamp(9)
    a(f"s_cmp_ge_u32 {S_WAVE}, 4")
    a("s_cbranch_scc1 L_A_s5")
    gather([f"buffer_load_dwordx4 {V(200+4*s)}, v{T_CG}, {WS}, s85 offen offset:{128*s} sc1" for s in range(4)], [203+4*s for s in range(4)])
    stamp(10)
    a("s_waitcnt lgkmcnt(0)")
    for s in range(4):
        for x in range(2): a(f"v_mov_b32_dpp v{202+4*s+x}, v{200+4*s+x} row_ror:8 {DPPM}")
    for s in range(4):
        for x in range(4):
            a(f"v_mfma_f32_16x16x32_bf16 {V(216+4*x)}, {V(8+16*s+4*x)}, {V(200+4*s)}, {'0' if s==0 else V(216+4*x)}")
    for x in range(4):
        for y in range(2): a(f"v_cvt_pk_bf16_f32 v{160+2*x+y}, v{216+4*x+2*y}, v{217+4*x+2*y}")
    a(f"s_mov_b64 exec, {MN8}")
    for x in range(2): a(f"ds_write_b128 v{T_CTW}, {V(160+4*x)} offset:{512*x}")
    a("s_mov_b64 exec, -1")
    a("s_waitcnt lgkmcnt(0)")
    a.label("L_A_s5")
    a("s_barrier")
    for s in range(2):
        a(f"ds_read_b128 {V(88+4*s)}, v{T_CTR} offset:{512*s}")
        for x in range(2):
            for T in range(2): a(f"ds_read_b64_tr_b16 {V(72+8*x+4*s+2*T,2)}, v{T_WO+2*x+s} offset:{32768*T}")
    for s in range(2): a(f"ds_read_b128 {V(96+4*s)}, v{T_CTR} offset:{1024+512*s}")
    for k in range(4):
        a(f"s_waitcnt lgkmcnt({(7, 2, 1, 0)[k]})")
        for x in range(2):
            a(f"v_mfma_f32_16x16x32_bf16 {V(160+4*x)}, {V(72+8*x+4*(k&1))}, {V(88+4*k)}, {'0' if k==0 else V(160+4*x)}")
    for r in range(4): a(f"v_add_f32_dpp v{168+r}, v{160+r}, v{160+r} row_ror:8 row_mask:0xf bank_mask:0x3")
    for r in range(4): a(f"v_add_f32_dpp v{168+r}, v{164+r}, v{164+r} row_ror:8 row_mask:0xf bank_mask:0xc")
    pack24(108, 168)
    a(f"buffer_store_dwordx4 {V(108)}, v{T_FIN}, {WS}, s86 offen sc1")
```

```python
import sys, struct, math
sys.path.insert(0, "work")
from asmlib import Asm

NAME = "gated_mix__compressed_kv_cla__sliding_block_cached__decode"
XT, QA, QB, QABS, CC, OB, TS, FIN, PART, WSEND = 0x1000, 0x10000, 0x90000, 0x110000, 0x190000, 0x210000, 0x250000, 0x280000, 0x400000, 0xA00000
SCALE = (128 ** -0.5) * math.log2(math.e)
def f2u(x): return struct.unpack("<I", struct.pack("<f", x))[0]
DPPM = "row_mask:0xf bank_mask:0xf"

S_W, S_WAVE, S_K, S_TAG, S_SPIN, S_X = "s2", "s3", "s4", "s5", "s6", "s7"
WS, SA, SB, SC, SD, SE, SX, SG, SO, SF = [f"s[{i}:{i+3}]" for i in (8, 12, 16, 20, 24, 28, 32, 36, 40, 44)]
S_H, S_Q, S_LOC, S_LO, S_HI = "s88", "s89", "s95", "s98", "s99"
MN8 = "s[96:97]"
P = dict(x=48, ckv=50, wqa=52, wuk=54, wuv=56, woa=58, bx=60, kc=62, vc=64, wqb=66, wob=68, gate=70, out=72, dbg=74, ws=76)
DEF = dict(DU=6, DA=20, DQ=170, PRE=6, N0=12, N1=14, KP1=4, KP2=6, VG=20, VP2=6, WQNT=1, DB=0, QSC=0, W1=8, W2=0, WNT=1, ST3=0, LOCAL=1, WARM=1, DW=0, SPIN=30000, NOB=0, FB=1, WB=4, WB2=4, NB2=12, WA0=4, NA0=12, WA1=16, XB=1, PRIO=1, DG=0)

def gen(dev=False, opt=None):
    o = dict(DEF); o.update(opt or {})
    a = Asm()
    def stamp(k):
        if dev: a(f"s_memrealtime s[{48+2*k}:{49+2*k}]")
    def stamp_init():
        if dev:
            for k in range(15): a(f"s_mov_b64 s[{48+2*k}:{49+2*k}], 0")
    def sleep(n):
        while n > 0:
            a(f"s_sleep {min(n,127)}"); n -= 127
    def srd(dst, ptr, nbytes):
        b = int(dst[2:].split(":")[0])
        a(f"s_mov_b64 s[{b}:{b+1}], s[{P[ptr]}:{P[ptr]+1}]")
        a(f"s_mov_b32 s{b+2}, {hex(nbytes)}"); a(f"s_mov_b32 s{b+3}, 0x00020000")
    def ws_tag():
        a("s_add_u32 s76, s76, 0xffffff"); a("s_addc_u32 s77, s77, 0"); a("s_and_b32 s76, s76, 0xff000000")
        a(f"s_load_dword {S_TAG}, s[76:77], 0")
    def V(b, n=4): return f"v[{b}:{b+n-1}]"
    def check(loads, tagregs):
        lp = a.newlabel("L_poll"); dn = a.newlabel("L_got")
        a.label(lp)
        a("s_mov_b64 s[0:1], exec")
        for r in tagregs: a(f"v_cmpx_eq_u32 vcc, {S_TAG}, v{r}")
        a("s_andn2_b64 exec, s[0:1], exec")
        a(f"s_cbranch_scc0 {dn}")
        for l in loads: a(l)
        a(f"s_sub_u32 {S_SPIN}, {S_SPIN}, 1")
        a(f"s_cmp_gt_i32 {S_SPIN}, 0")
        a("s_waitcnt vmcnt(0)")
        a(f"s_cbranch_scc1 {lp}")
        a.label(dn)
        a("s_mov_b64 exec, -1")
        a("s_nop 3")
    def gather(loads, tagregs):
        for l in loads: a(l)
        a("s_waitcnt vmcnt(0)")
        check(loads, tagregs)
    def perm16(dst, src):
        for i in range(8):
            for p in range(2):
                a(f"v_perm_b32 v{dst+2*i+p}, v{src+4*(2*p+1)+(i>>1)}, v{src+4*(2*p)+(i>>1)}, {S_HI if i&1 else S_LO}")
    def unpack24(g, t):
        a(f"v_perm_b32 v{t}, v{g+1}, v{g}, s90")
        a(f"v_perm_b32 v{t}, v{g+2}, v{t}, s91")
    def pack24(dst, src):
        for k in range(3): a(f"v_perm_b32 v{dst+k}, v{src+k}, v{src+3}, s{92+k}")
    def sum4x24(g):
        for e in range(4): unpack24(g+4*e, g+4*e+3)
        for x in (0, 2):
            a(f"v_pk_add_f32 {V(g+x,2)}, {V(g+x,2)}, {V(g+4+x,2)}"); a(f"v_pk_add_f32 {V(g+8+x,2)}, {V(g+8+x,2)}, {V(g+12+x,2)}")
        for x in (0, 2): a(f"v_pk_add_f32 {V(g+x,2)}, {V(g+x,2)}, {V(g+8+x,2)}")
    VG = 250
    def gate_load(vd):
        a(f"s_bfe_u32 s78, {S_W}, 0x10003"); a("s_lshl_b32 s78, s78, 12")
        a("v_lshrrev_b32 v2, 2, v1"); a("v_lshlrev_b32 v2, 6, v2"); a("v_and_b32 v3, 3, v1"); a("v_lshl_add_u32 v3, v3, 10, v2")
        for e in range(4): a(f"buffer_load_dwordx4 {V(vd+4*e)}, v3, {SX}, s78 offen offset:{16*e}")
        for e in range(4): a(f"buffer_load_dwordx4 {V(vd+16+4*e)}, v2, {SG}, 0 offen offset:{16*e}")
    def gate_calc(vd):
        a("v_mov_b32 v2, 0"); a("v_mov_b32 v3, 0")
        for q in range(16): a(f"v_dot2c_f32_bf16 v{2+(q&1)}, v{vd+q}, v{vd+16+q}")
        a("s_nop 3")
        a("v_add_f32 v2, v2, v3")
        for d in (4, 8): a(f"v_add_f32_dpp v2, v2, v2 row_ror:{d} {DPPM}")
        a("v_mov_b32 v3, v2"); a("v_permlane16_swap_b32 v2, v3"); a("v_add_f32 v2, v2, v3")
        a("v_mov_b32 v3, v2"); a("v_permlane32_swap_b32 v2, v3"); a("v_add_f32 v2, v2, v3")
        a(f"v_mul_f32 v2, {hex(f2u(-math.log2(math.e)))}, v2")
        a("v_exp_f32 v2, v2"); a("v_add_f32 v2, 1.0, v2"); a(f"v_rcp_f32 v{VG}, v2")
    def tagwait():
        a("s_waitcnt lgkmcnt(0)")
        a(f"s_add_u32 {S_TAG}, {S_TAG}, 0x9e3779b9")
        a(f"s_add_u32 {S_LOC}, {S_LOC}, {S_TAG}")
    def xt_publish():
        sk = a.newlabel("L_nxt")
        a(f"s_cmp_lg_u32 {S_WAVE}, 6"); a(f"s_cbranch_scc1 {sk}")
        a(f"s_lshl_b32 s78, {S_X}, 7"); a(f"s_bfe_u32 s79, {S_W}, 0x10003"); a("s_lshl_b32 s79, s79, 6"); a("s_add_u32 s78, s78, s79")
        a(f"s_lshl2_add_u32 s78, {S_K}, s78"); a(f"v_mov_b32 v2, {S_LOC}"); a("v_mov_b32 v3, 0")
        a("s_mov_b64 exec, 1")
        a(f"buffer_store_dword v2, v3, {WS}, s78 offen offset:{XT-0} sc1" if XT < 4096 else f"s_add_u32 s78, s78, {XT}")
        if XT >= 4096: a(f"buffer_store_dword v2, v3, {WS}, s78 offen sc1")
        a("s_mov_b64 exec, -1")
        a.label(sk)
    def xt_load(vd, va):
        a(f"s_lshl_b32 s78, {S_X}, 7"); a(f"s_bfe_u32 s79, {S_W}, 0x10003"); a("s_lshl_b32 s79, s79, 6"); a("s_add_u32 s78, s78, s79")
        a(f"s_add_u32 s78, s78, {XT}"); a(f"v_lshlrev_b32 v{va}, 2, v6")
        a(f"buffer_load_dword v{vd}, v{va}, {WS}, s78 offen sc1")
    def xt_eval(vd):
        a(f"v_cmp_eq_u32 vcc, {S_LOC}, v{vd}")
        a("s_nop 1")
        a("s_cmp_eq_u64 vcc, -1")
        a(f"s_cselect_b32 {S_LOC}, {o['LOCAL']}, 0")
    def both(fn):
        l1 = a.newlabel("L_rem"); l2 = a.newlabel("L_std")
        a(f"s_cmp_eq_u32 {S_LOC}, 1"); a(f"s_cbranch_scc0 {l1}")
        fn(""); a(f"s_branch {l2}")
        a.label(l1); a("s_nop 7"); fn(" sc1")
        a.label(l2)

    a(f"s_cmp_ge_u32 {S_W}, 256")
    a("s_cbranch_scc1 L_end")
    if dev: a("s_memrealtime s[100:101]")
    a("s_load_dwordx16 s[48:63], s[0:1], 0")
    a("s_load_dwordx8 s[64:71], s[0:1], 64")
    a("s_load_dwordx4 s[72:75], s[0:1], 96")
    a("s_load_dwordx2 s[76:77], s[0:1], 112")
    a("v_lshrrev_b32 v2, 6, v0")
    a("v_and_b32 v1, 63, v0")
    a(f"v_readfirstlane_b32 {S_WAVE}, v2")
    a(f"s_and_b32 {S_X}, {S_W}, 7"); a(f"s_lshr_b32 {S_K}, {S_W}, 4")
    a(f"s_lshr_b32 {S_H}, {S_K}, 2"); a(f"s_lshl2_add_u32 {S_H}, {S_X}, {S_H}"); a(f"s_and_b32 {S_Q}, {S_K}, 3")
    a(f"s_getreg_b32 {S_LOC}, hwreg(HW_REG_XCC_ID, 0, 4)")
    a(f"s_mov_b32 {S_LO}, 0x05040100"); a(f"s_mov_b32 {S_HI}, 0x07060302")
    a(f"s_mov_b32 {S_SPIN}, {o['SPIN']}")
    a("s_mov_b32 s90, 0x0c04000c"); a("s_mov_b32 s91, 0x0402010c")
    a("s_mov_b32 s92, 0x07060501"); a("s_mov_b32 s93, 0x07060502"); a("s_mov_b32 s94, 0x07060503")
    a("s_mov_b32 s96, 0x00ff00ff"); a("s_mov_b32 s97, 0x00ff00ff")
    a("v_lshrrev_b32 v5, 4, v1")
    a("v_and_b32 v6, 15, v1")
    a("v_lshlrev_b32 v7, 4, v1")
    a("v_and_b32 v4, 7, v1")
    a(f"s_bitcmp1_b32 {S_W}, 3")
    a("s_cbranch_scc0 L_A")

    a.c("==== B role")
    if o["NOB"] == 1: a("s_branch L_end")
    LB_R, LB_Q, LB_QB, LB_ML, LB_LSE, LB_ACT, LB_O, LB_UK, LB_WO = 0, 34816, 37120, 38144, 38400, 38656, 40960, 57344, 90112
    RW, RB, XL, XH, RP, RA, RU = 72, 160, 176, 184, 192, 224, 56
    Q = []
    def vm(name, line): a(line); Q.append(name)
    def wait(name):
        n = len(Q) - 1 - max(i for i, x in enumerate(Q) if x == name)
        a(f"s_waitcnt vmcnt({min(n, 63)})")
    a(f"s_lshl_b32 s78, {S_WAVE}, 17"); a(f"s_lshl_b32 s79, {S_H}, 8")
    a(f"s_lshl_b32 s87, {S_Q}, 20"); a("s_add_u32 s87, s87, s78"); a("s_lshr_b32 s84, s87, 12"); a("s_add_u32 s87, s87, s79")
    a("v_lshlrev_b32 v152, 15, v5"); a("v_lshl_add_u32 v152, v6, 4, v152")
    for e in range(1, 4): a(f"v_add_u32 v{152+e}, {8192*e}, v152")
    a("v_xor_b32 v2, v6, v5"); a("v_lshlrev_b32 v2, 4, v2"); a("v_lshl_add_u32 v140, v5, 13, v2")
    for e in range(1, 4): a(f"v_xor_b32 v{140+e}, {64*e + 32768*e}, v140")
    a(f"s_lshl_b32 s78, {S_WAVE}, 12"); a(f"s_add_u32 s78, s78, {LB_UK}"); a("s_mov_b32 m0, s78")
    a("v_lshl_add_u32 v2, v6, 8, v2"); a("v_add_u32 v144, s78, v2")
    a("v_lshlrev_b32 v3, 10, v4"); a("v_lshl_add_u32 v3, v5, 3, v3")
    a("s_waitcnt lgkmcnt(0)")
    srd(SA, "wqa", 0x400000)
    for e in range(4): vm(f"b{e}", f"buffer_load_dwordx4 {V(RB+4*e)}, v{152+e}, {SA}, s87 offen nt")
    srd(SX, "x", 8192)
    vm("x", f"buffer_load_dwordx2 {V(XL,2)}, v3, {SX}, s84 offen")
    ws_tag()
    srd(SB, "wuk", 0x400000)
    if o["FB"]: a("s_barrier")
    for e in range(4): vm("uk", f"buffer_load_dwordx4 v{140+e}, {SB}, s87 offen nt lds"); a("s_add_u32 m0, m0, 1024")
    srd(SF, "wqb", 0x400000)
    srd(WS, "ws", WSEND); srd(SO, "out", 8192); srd(SC, "wob", 0x400000); srd(SD, "kc", 0x4000000); srd(SE, "vc", 0x4000000); srd(SG, "gate", 1024)
    stamp_init()
    stamp(0)
    st = dict(i=0)
    def kv(n, upto=36, win=True):
        for _ in range(n):
            i = st["i"]
            if i >= upto: return
            st["i"] += 1
            e = i & 15
            W = o["WB"] if i < o["NB2"] else o["WB2"]
            if win and W < 64: a(f"s_waitcnt vmcnt({W-1})")
            if i < 16: vm(f"k{e}", f"buffer_load_dwordx4 {V(8+4*e)}, v151, {SD}, s{80+(e>>2)} offen offset:{1024*(e&3)} nt")
            elif i < 32: vm(f"v{e}", f"buffer_load_dwordx4 {V(72+4*e)}, v7, {SE}, s{80+(e>>2)} offen offset:{1024*(e&3)} nt")
            else:
                vm("wo", f"buffer_load_dwordx4 v{140+(e>>1)}, {SC}, s86 offen nt lds")
                if e < 3: a("s_add_u32 s86, s86, 4096"); a("s_add_u32 m0, m0, 1024")
    for e in range(1, 4): a(f"v_xor_b32 v{144+e}, {64*e}, v144")
    a(f"s_mul_i32 s84, {S_WAVE}, 4352"); a("v_mul_u32_u24 v2, 272, v5"); a("v_lshl_add_u32 v2, v6, 4, v2"); a("v_add_u32 v156, s84, v2")
    a("v_mul_u32_u24 v149, 272, v6"); a("v_bfe_u32 v2, v1, 4, 1"); a("v_lshl_add_u32 v149, v2, 7, v149")
    a("v_bfe_u32 v2, v0, 5, 3"); a("v_lshl_add_u32 v149, v2, 4, v149")
    a("v_and_b32 v3, 31, v1"); a("v_lshlrev_b32 v3, 4, v3"); a("v_lshl_add_u32 v150, v2, 13, v3"); a("v_lshl_add_u32 v157, v2, 9, v3")
    a("v_mul_u32_u24 v158, 272, v2"); a("v_and_b32 v2, 3, v1"); a("v_lshl_add_u32 v158, v2, 6, v158"); a("v_bfe_u32 v2, v1, 2, 3"); a("v_lshl_add_u32 v158, v2, 1, v158")
    a("v_mul_u32_u24 v159, 272, v4"); a("v_lshl_add_u32 v159, v5, 4, v159")
    a("v_lshlrev_b32 v148, 16, v4"); a("v_lshl_add_u32 v148, v5, 4, v148")
    a(f"s_lshl_b32 s84, {S_H}, 11"); a(f"s_lshl_b32 s85, {S_Q}, 9"); a("s_add_u32 s84, s84, s85"); a(f"s_lshl_b32 s85, {S_WAVE}, 6"); a("s_add_u32 s84, s84, s85")
    a(f"s_add_u32 s84, s84, {QABS}")
    a(f"s_lshl_b32 s85, {S_H}, 14"); a(f"s_add_u32 s85, s85, {QA}")
    for p in range(4):
        a(f"s_add_u32 s{80+p}, {S_Q}, {p}"); a(f"s_and_b32 s{80+p}, s{80+p}, 3"); a(f"s_lshl_b32 s{80+p}, s{80+p}, 12"); a(f"s_add_u32 s{80+p}, s{80+p}, s85")
    def s1(first):
        for p in range(2):
            wait(f"b{2*p+1}")
            for i in range(8):
                a(f"v_perm_b32 v{RP+2*i+p}, v{RB+4*(2*p+1)+(i>>1)}, v{RB+4*(2*p)+(i>>1)}, {S_HI if i&1 else S_LO}")
        if first:
            wait("x")
            for r in range(2): a(f"v_cndmask_b32 v{XH+r}, v{XL+r}, 0, {MN8}")
            for r in range(2): a(f"v_cndmask_b32 v{XL+r}, 0, v{XL+r}, {MN8}")
        for j in range(8):
            a(f"v_mfma_f32_16x16x16_bf16 {V(RA+4*(j&3))}, {V(RP+2*j,2)}, {V(XH if j >= 4 else XL,2)}, {'0' if j < 4 else V(RA+4*(j&3))}")
        for T in range(4): a(f"ds_write_b128 v156, {V(RA+4*T)} offset:{LB_R+1088*T}")
    def s1r(vs, ss):
        for w in range(8): a(f"ds_read_b128 {V(RP+4*w)}, v149 offset:{LB_R+4352*w}")
        a(f"v_mov_b32 v{RA+3}, {S_TAG}")
        for w in range(4):
            a(f"s_waitcnt lgkmcnt({6-2*w})")
            for x in (0, 2): a(f"v_pk_add_f32 {V(RP+8*w+x,2)}, {V(RP+8*w+x,2)}, {V(RP+8*w+4+x,2)}")
            if w & 1:
                for x in (0, 2): a(f"v_pk_add_f32 {V(RP+8*w-8+x,2)}, {V(RP+8*w-8+x,2)}, {V(RP+8*w+x,2)}")
        for x in (0, 2): a(f"v_pk_add_f32 {V(RP+x,2)}, {V(RP+x,2)}, {V(RP+16+x,2)}")
        pack24(RA, RP)
        a(f"buffer_store_dwordx4 {V(RA)}, v{vs}, {WS}, {ss} offen sc1")
    s1(True)
    tagwait()
    stamp(1)
    a("s_barrier")
    a(f"s_cmp_lt_u32 {S_WAVE}, 4")
    a("s_cbranch_scc1 L_B_lo")
    s1r(157, "s80")
    sleep(o["DG"])
    a(f"s_mov_b32 s86, {hex(f2u(SCALE))}"); a("s_mov_b32 s85, s86")
    gather([f"buffer_load_dwordx4 {V(RA+4*p)}, v157, {WS}, s{80+p} offen sc1" for p in range(1, 4)], [RA+3+4*p for p in range(1, 4)])
    for s in range(4): a(f"ds_read_b128 {V(RU+4*s)}, v{144+s}")
    sum4x24(RA)
    a(f"v_mul_f32 v{RA}, s86, v{RA}"); a(f"v_mul_f32 v{RA+1}, s86, v{RA+1}"); a(f"v_mul_f32 v{RA+2}, s86, v{RA+2}"); a(f"v_mul_f32 v{RA+3}, s86, v{RA+3}")
    a(f"v_cvt_pk_bf16_f32 v{RA}, v{RA}, v{RA+1}"); a(f"v_cvt_pk_bf16_f32 v{RA+1}, v{RA+2}, v{RA+3}")
    for x in range(2):
        a(f"ds_write_b16 v158, v{RA+x} offset:{LB_Q+32*x}"); a(f"ds_write_b16_d16_hi v158, v{RA+x} offset:{LB_Q+32*x+16}")
    a("s_branch L_B_b2")
    a.label("L_B_lo")
    a("s_waitcnt vmcnt(0)")
    for s in range(4): a(f"ds_read_b128 {V(RU+4*s)}, v{144+s}")
    a.label("L_B_b2")
    Q.clear()
    a("v_bfe_u32 v3, v1, 2, 2"); a("v_lshlrev_b32 v3, 8, v3"); a("v_lshl_add_u32 v3, v5, 6, v3")
    a("v_and_b32 v2, 3, v1"); a("v_lshl_add_u32 v151, v2, 4, v3")
    a(f"v_mov_b32 v{RA+7}, {S_TAG}")
    a("s_waitcnt lgkmcnt(0)")
    stamp(2)
    a("s_barrier")
    for s in range(4): a(f"ds_read_b128 {V(RP+4*s)}, v159 offset:{LB_Q+64*s}")
    a(f"s_lshr_b32 s78, {S_K}, 1"); a(f"s_lshl3_add_u32 s80, s78, {S_X}"); a("s_lshl_b32 s80, s80, 20"); a(f"s_and_b32 s81, {S_K}, 1"); a("s_lshl_b32 s81, s81, 17")
    a("s_add_u32 s80, s80, s81"); a(f"s_lshl_b32 s81, {S_WAVE}, 14"); a("s_add_u32 s80, s80, s81"); a(f"s_add_u32 s80, s80, {3072*256}")
    for k in range(1, 4): a(f"s_add_u32 s{80+k}, s80, {4096*k}")
    for s in range(4):
        a(f"s_waitcnt lgkmcnt({3-s})")
        a(f"v_mfma_f32_16x16x32_bf16 {V(RA+8*(s&1))}, {V(RU+4*s)}, {V(RP+4*s)}, {'0' if s<2 else V(RA+8*(s&1))}")
    for x in (0, 2): a(f"v_pk_add_f32 {V(RA+x,2)}, {V(RA+x,2)}, {V(RA+8+x,2)}")
    a(f"v_cvt_pk_bf16_f32 v{RA+4}, v{RA}, v{RA+1}"); a(f"v_cvt_pk_bf16_f32 v{RA+5}, v{RA+2}, v{RA+3}")
    a(f"s_mov_b64 exec, {MN8}")
    a(f"buffer_store_dwordx4 {V(RA+4)}, v148, {WS}, s84 offen sc1")
    a("s_mov_b64 exec, -1")
    stamp(3)
    if o["NOB"] == 2: a("s_branch L_end")
    if o["FB"] > 1: a("s_barrier")
    sleep(o["DB"])
    for e in range(4): vm(f"b{e}", f"buffer_load_dwordx4 {V(RB+4*e)}, v{152+e}, {SF}, s87 offen nt")
    kv(o["KP2"])
    xt_publish()
    a(f"s_lshl_b32 s84, {S_X}, 16"); a(f"s_add_u32 s84, s84, {QB}"); a(f"s_lshl_b32 s85, {S_K}, 9"); a("s_add_u32 s85, s85, s84")
    s1(False)
    a("v_and_b32 v3, 31, v1"); a("v_lshlrev_b32 v3, 4, v3")
    a("v_lshrrev_b32 v2, 5, v1"); a("v_lshl_add_u32 v146, v2, 11, v3")
    a("v_lshrrev_b32 v2, 5, v0"); a("v_lshlrev_b32 v2, 8, v2"); a("v_and_b32 v3, 3, v1"); a("v_lshl_add_u32 v2, v3, 6, v2")
    a("v_bfe_u32 v3, v1, 2, 3"); a("v_lshl_add_u32 v147, v3, 1, v2")
    a(f"s_lshr_b32 s86, {S_K}, 1"); a("s_lshl_b32 s86, s86, 13"); a("s_add_u32 s84, s84, s86"); a(f"s_lshl_b32 s86, {S_WAVE}, 12"); a("s_add_u32 s84, s84, s86")
    a(f"s_add_u32 m0, s86, {LB_WO}")
    a("v_lshlrev_b32 v2, 1, v5"); a("v_xor_b32 v2, v2, v6"); a("v_lshlrev_b32 v2, 4, v2"); a("v_lshl_add_u32 v140, v5, 10, v2"); a("v_xor_b32 v141, 128, v140")
    a(f"s_lshl_b32 s86, {S_H}, 17"); a(f"s_lshl_b32 s87, {S_WAVE}, 14"); a("s_add_u32 s86, s86, s87"); a(f"s_lshl_b32 s87, {S_Q}, 8"); a("s_add_u32 s86, s86, s87")
    a("s_waitcnt lgkmcnt(0)")
    a("s_barrier")
    a(f"s_cmp_lt_u32 {S_WAVE}, 4")
    a("s_cbranch_scc1 L_B_nr")
    s1r(150, "s85")
    a.label("L_B_nr")
    stamp(4)
    kv(99, o["VG"])
    gl = [f"buffer_load_dwordx4 {V(RA+4*p)}, v146, {WS}, s84 offen offset:{512*p} sc1" for p in range(4)]
    a(f"s_cmp_ge_u32 {S_WAVE}, 2")
    a("s_cbranch_scc1 L_B_g1")
    xt_load(RA+16, 2)
    for l in gl: a(l)
    a.label("L_B_g1")
    a(f"s_cmp_lg_u32 {S_WAVE}, 7"); a("s_cbranch_scc1 L_B_ng")
    gate_load(RP)
    a.label("L_B_ng")
    Q.append("g");
    kv(o["VP2"])
    a(f"s_cmp_ge_u32 {S_WAVE}, 2")
    a("s_cbranch_scc1 L_B_g2")
    wait("g")
    stamp(5)
    check(gl, [RA+3+4*p for p in range(4)])
    xt_eval(RA+16)
    sum4x24(RA)
    a(f"v_cvt_pk_bf16_f32 v{RA}, v{RA}, v{RA+1}"); a(f"v_cvt_pk_bf16_f32 v{RA+1}, v{RA+2}, v{RA+3}")
    for x in range(2):
        a(f"ds_write_b16 v147, v{RA+x} offset:{LB_QB+32*x}"); a(f"ds_write_b16_d16_hi v147, v{RA+x} offset:{LB_QB+32*x+16}")
    a("s_waitcnt lgkmcnt(0)")
    a.label("L_B_g2")
    a(f"s_cmp_lg_u32 {S_WAVE}, 7"); a("s_cbranch_scc1 L_B_ng2")
    wait("g")
    gate_calc(RP)
    a.label("L_B_ng2")
    Q.remove("g")
    a("s_barrier")
    stamp(6)
    a(f"ds_read_b128 {V(152)}, v151 offset:{LB_QB}")
    def s_from(e):
        d = 160 + 4*(e & 3)
        a(f"v_mov_b32_dpp v{200+e}, v{d} quad_perm:[0,0,0,0] {DPPM}")
        for r in range(1, 4):
            a(f"v_add_f32_dpp v{200+e}, v{d+r}, v{200+e} quad_perm:[{r},{r},{r},{r}] {DPPM}")
    kv(99, 16)
    wait("k15")
    a("s_waitcnt lgkmcnt(0)")
    for e in range(16):
        a(f"v_mfma_f32_16x16x32_bf16 {V(160+4*(e&3))}, {V(8+4*e)}, {V(152)}, 0")
        if e >= 2: s_from(e-2)
        kv(1)
    s_from(14); s_from(15)
    stamp(7)
    a("v_max3_f32 v2, v200, v201, v202")
    for e in range(3, 15, 2): a(f"v_max3_f32 v2, v2, v{200+e}, v{201+e}")
    a("v_max_f32 v2, v2, v215")
    a("v_mov_b32 v3, v2"); a("v_permlane16_swap_b32 v2, v3"); a("v_max_f32 v2, v2, v3")
    a("v_mov_b32 v3, v2"); a("v_permlane32_swap_b32 v2, v3"); a("v_max_f32 v2, v2, v3")
    a(f"s_mov_b32 s81, {hex(f2u(SCALE))}")
    a("v_mul_f32 v216, s81, v2")
    for e in range(16): a(f"v_fma_f32 v{200+e}, v{200+e}, s81, -v216")
    for e in range(16): a(f"v_exp_f32 v{200+e}, v{200+e}")
    a("v_add_f32 v217, v200, v201")
    for e in range(2, 16): a(f"v_add_f32 v217, v217, v{200+e}")
    a("v_mov_b32 v3, v217"); a("v_permlane16_swap_b32 v217, v3"); a("v_add_f32 v217, v217, v3")
    a("v_mov_b32 v3, v217"); a("v_permlane32_swap_b32 v217, v3"); a("v_add_f32 v217, v217, v3")
    a("v_bfe_u32 v142, v1, 2, 2"); a("v_lshlrev_b32 v2, 6, v142")
    a(f"s_lshl_b32 s82, {S_WAVE}, 3"); a("v_add_u32 v3, s82, v2")
    a(f"ds_write_b64 v3, v[216:217] offset:{LB_ML}")
    a("s_waitcnt lgkmcnt(0)")
    a("s_barrier")
    for k in range(4): a(f"ds_read_b128 {V(160+4*k)}, v2 offset:{LB_ML+16*k}")
    a("s_waitcnt lgkmcnt(0)")
    a("v_max3_f32 v218, v160, v162, v164"); a("v_max3_f32 v218, v218, v166, v168"); a("v_max3_f32 v218, v218, v170, v172"); a("v_max_f32 v218, v218, v174")
    for k in range(8): a(f"v_sub_f32 v{160+2*k}, v{160+2*k}, v218")
    for k in range(8): a(f"v_exp_f32 v{160+2*k}, v{160+2*k}")
    a("v_mul_f32 v219, v160, v161")
    for k in range(1, 8): a(f"v_fmac_f32 v219, v{160+2*k}, v{161+2*k}")
    a("v_sub_f32 v216, v216, v218"); a("v_exp_f32 v216, v216"); a("v_rcp_f32 v217, v219"); a("v_log_f32 v219, v219")
    a("v_mul_f32 v216, v216, v217"); a("v_add_f32 v219, v219, v218")
    a("v_lshlrev_b32 v142, 2, v142")
    a(f"ds_write_b32 v142, v219 offset:{LB_LSE}")
    for e in range(16): a(f"v_mul_f32 v{200+e}, v{200+e}, v216")
    for k in range(8): a(f"v_cvt_pk_bf16_f32 v{220+k}, v{200+2*k}, v{201+2*k}")
    a(f"s_lshl_b32 s82, {S_WAVE}, 11"); a("v_lshl_add_u32 v228, v1, 5, s82")
    a("v_lshlrev_b32 v229, 4, v0")
    a("v_lshrrev_b32 v2, 5, v0"); a("v_and_b32 v3, 31, v1"); a("v_lshlrev_b32 v230, 13, v2"); a("v_lshl_add_u32 v230, v3, 4, v230"); a("v_lshlrev_b32 v231, 2, v2")
    a(f"s_lshl_b32 s82, {S_X}, 15"); a(f"s_lshl_b32 s83, {S_K}, 9"); a("s_add_u32 s82, s82, s83"); a(f"s_add_u32 s82, s82, {OB}")
    a("v_lshrrev_b32 v2, 5, v1"); a("v_lshlrev_b32 v232, 2, v2"); a("v_lshl_add_u32 v232, v3, 3, v232"); a(f"s_mul_i32 s83, {S_WAVE}, 272"); a("v_add_u32 v232, s83, v232")
    a("v_lshlrev_b32 v235, 31, v2"); a("v_xor_b32 v235, 1.0, v235")
    a("v_mul_u32_u24 v233, 272, v4"); a("v_lshl_add_u32 v233, v5, 4, v233")
    a("v_bfe_u32 v2, v1, 2, 2"); a("v_lshl_add_u32 v3, v5, 3, v2"); a("v_lshlrev_b32 v234, 8, v3")
    a("v_lshlrev_b32 v2, 1, v2"); a("v_and_b32 v3, 8, v3"); a("v_or_b32 v2, v2, v3")
    a("v_bfe_u32 v3, v1, 1, 1"); a(f"s_lshl_b32 s83, {S_WAVE}, 1"); a("v_add_u32 v3, s83, v3"); a("v_xor_b32 v2, v2, v3")
    a("v_lshl_add_u32 v234, v2, 4, v234"); a("v_and_b32 v2, 1, v1"); a("v_lshl_add_u32 v234, v2, 3, v234"); a(f"v_add_u32 v234, {LB_WO}, v234")
    a("v_mul_u32_u24 v236, 0x3000, v5"); a("v_lshl_add_u32 v236, v4, 4, v236")
    a(f"s_lshl_b32 s83, {S_Q}, 3"); a(f"s_add_u32 s83, s83, {S_WAVE}"); a("s_mul_i32 s83, s83, 0xc000"); a(f"s_lshl_b32 s84, {S_H}, 7"); a("s_add_u32 s83, s83, s84")
    a(f"s_add_u32 s83, s83, {FIN+64*128}")
    a(f"s_lshl_b32 s80, {S_H}, 13"); a(f"s_lshl_b32 s81, {S_WAVE}, 10"); a("s_add_u32 s80, s80, s81"); a(f"s_add_u32 s80, s80, {OB}")
    a(f"v_mov_b32 v139, {S_TAG}")
    stamp(8)
    assert st["i"] == 36
    for z in range(2):
        for p in range(4):
            e = 8*z + 2*p
            wait(f"v{e+1}")
            for i in range(8):
                a(f"v_perm_b32 v{8+32*z+4*i+p}, v{72+4*(e+1)+(i>>1)}, v{72+4*e+(i>>1)}, {S_HI if i&1 else S_LO}")
                if p == 3 and i >= 1:
                    a(f"v_mfma_f32_16x16x32_bf16 {V(160+4*(i-1))}, {V(220+4*z)}, {V(8+32*z+4*(i-1))}, {'0' if z==0 else V(160+4*(i-1))}")
        a(f"v_mfma_f32_16x16x32_bf16 {V(188)}, {V(220+4*z)}, {V(8+32*z+28)}, {'0' if z==0 else V(188)}")
    for x in range(2):
        for k in range(1, 4): a(f"v_mov_b32 v{160+16*x+k}, v{160+16*x+4*k}")
        a(f"ds_write_b128 v228, {V(160+16*x)} offset:{LB_O+16*x}")
    a("s_waitcnt lgkmcnt(0)")
    a("s_barrier")
    stamp(9)
    a(f"s_cmp_ge_u32 {S_WAVE}, 2")
    a("s_cbranch_scc1 L_B_s5")
    for s in range(8): a(f"ds_read_b128 {V(160+4*s)}, v229 offset:{LB_O+2048*s}")
    a(f"ds_read_b32 v138, v231 offset:{LB_LSE}")
    for s in range(1, 8):
        a(f"s_waitcnt lgkmcnt({8-s})")
        a(f"v_pk_add_f32 v[160:161], v[160:161], {V(160+4*s,2)}"); a(f"v_pk_add_f32 v[162:163], v[162:163], {V(162+4*s,2)}")
    a("v_cvt_pk_bf16_f32 v136, v160, v161"); a("v_cvt_pk_bf16_f32 v137, v162, v163")
    a("s_waitcnt lgkmcnt(0)")
    both(lambda m: a(f"buffer_store_dwordx4 {V(136)}, v230, {WS}, s82 offen{m}"))
    a.label("L_B_s5")
    gather([f"buffer_load_dwordx4 {V(64)}, v7, {WS}, s80 offen sc1"], [67])
    stamp(10)
    a("v_mov_b32 v3, v66"); a("v_lshlrev_b32 v68, 16, v64"); a("v_and_b32 v69, 0xffff0000, v64")
    a("v_permlane32_swap_b32 v66, v3"); a("v_sub_f32 v2, v3, v66"); a("v_mul_f32 v2, v2, v235")
    a("v_exp_f32 v2, v2"); a("v_lshlrev_b32 v70, 16, v65"); a("v_add_f32 v2, 1.0, v2")
    a("v_rcp_f32 v2, v2"); a("v_and_b32 v71, 0xffff0000, v65")
    a("v_pk_mul_f32 v[68:69], v[68:69], v[2:3] op_sel_hi:[1,0]"); a("v_pk_mul_f32 v[70:71], v[70:71], v[2:3] op_sel_hi:[1,0]")
    a("v_permlane32_swap_b32 v68, v70"); a("v_permlane32_swap_b32 v69, v71")
    a("v_pk_add_f32 v[68:69], v[68:69], v[70:71]")
    a("v_cvt_pk_bf16_f32 v68, v68, v69")
    a(f"ds_write_b32 v232, v68 offset:{LB_ACT}")
    a("s_waitcnt lgkmcnt(0)")
    a("s_barrier")
    for s in range(4):
        a(f"ds_read_b128 {V(24+4*s)}, v233 offset:{LB_ACT+64*s}")
        for T in range(2): a(f"ds_read_b64_tr_b16 {V(8+4*s+2*T,2)}, v234 offset:{8192*s+1024*T}")
    for s in range(4):
        a(f"s_waitcnt lgkmcnt({9-3*s})")
        a(f"v_mfma_f32_16x16x32_bf16 {V(40)}, {V(8+4*s)}, {V(24+4*s)}, {'0' if s==0 else V(40)}")
    pack24(136, 40)
    a(f"s_mov_b64 exec, {MN8}")
    a(f"buffer_store_dwordx4 {V(136)}, v236, {WS}, s83 offen sc1")
    a("s_mov_b64 exec, -1")
    a("s_branch L_S6")

    import gen4a
    gen4a.gen_a(locals())

    a.label("L_S6")
    stamp(12)
    a(f"s_cmp_lg_u32 {S_WAVE}, 7")
    a("s_cbranch_scc1 L_fin")
    a(f"s_lshl3_add_u32 s78, {S_K}, {S_X}"); a("s_mul_i32 s80, s78, 0x3000"); a(f"s_bfe_u32 s79, {S_W}, 0x10003"); a("s_lshl_b32 s81, s79, 6")
    a("s_add_u32 s80, s80, s81"); a(f"s_add_u32 s80, s80, {FIN}"); a("s_add_u32 s81, s80, 4096"); a("s_add_u32 s82, s80, 8192")
    a("v_lshrrev_b32 v2, 2, v1"); a("v_lshlrev_b32 v2, 7, v2"); a("v_and_b32 v3, 3, v1"); a("v_lshl_add_u32 v2, v3, 4, v2")
    ld = [f"buffer_load_dwordx4 {V(80+4*e)}, v2, {WS}, s{80+(e>>1)} offen offset:{2048*(e&1)} sc1" for e in range(6)]
    for l in ld: a(l)
    a("v_lshlrev_b32 v3, 10, v3"); a("v_lshl_add_u32 v3, v5, 1, v3"); a("s_lshl_b32 s79, s79, 12"); a("s_lshl3_add_u32 s79, s78, s79")
    a(f"v_sub_f32 v104, 1.0, v{VG}")
    a("s_waitcnt vmcnt(0)")
    check(ld[4:], [99, 103])
    unpack24(96, 99); unpack24(100, 103)
    a("v_pk_add_f32 v[96:97], v[96:97], v[100:101]"); a("v_pk_add_f32 v[98:99], v[98:99], v[102:103]")
    a("v_pk_mul_f32 v[96:97], v[96:97], v[104:105] op_sel_hi:[1,0]"); a("v_pk_mul_f32 v[98:99], v[98:99], v[104:105] op_sel_hi:[1,0]")
    stamp(11)
    check(ld[:4], [83, 87, 91, 95])
    stamp(13)
    sum4x24(80)
    a(f"v_pk_fma_f32 v[88:89], v[80:81], {V(VG,2)}, v[96:97] op_sel_hi:[1,0,1]"); a(f"v_pk_fma_f32 v[90:91], v[82:83], {V(VG,2)}, v[98:99] op_sel_hi:[1,0,1]")
    a("v_permlane32_swap_b32 v88, v90"); a("v_permlane32_swap_b32 v89, v91")
    a("v_pk_add_f32 v[88:89], v[88:89], v[90:91]")
    a("v_permlane16_swap_b32 v88, v89"); a("v_add_f32 v88, v88, v89")
    a(f"v_add_f32_dpp v88, v88, v88 row_ror:4 {DPPM}"); a(f"v_add_f32_dpp v88, v88, v88 row_ror:8 {DPPM}")
    a("v_cvt_pk_bf16_f32 v88, v88, v88")
    a("s_mov_b32 exec_lo, 0x000f000f"); a("s_mov_b32 exec_hi, 0x000f000f")
    a(f"buffer_store_short v88, v3, {SO}, s79 offen")
    a(f"s_cmp_lg_u32 {S_W}, 0")
    a("s_cbranch_scc1 L_fin")
    a("s_mov_b64 exec, 1")
    a("v_mov_b32 v2, 0"); a(f"v_mov_b32 v3, {S_TAG}")
    a(f"buffer_store_dword v3, v2, {WS}, 0 offen sc1")
    a.label("L_fin")
    if dev:
        a("s_mov_b64 exec, -1")
        stamp(14)
        a("s_waitcnt lgkmcnt(0)")
        a("s_not_b32 s100, s100"); a("v_writelane_b32 v255, s100, 15")
        for k in range(15): a(f"v_writelane_b32 v255, s{48+2*k}, {k}")
        a(f"s_lshl_b32 s80, {S_W}, 3"); a(f"s_add_u32 s80, s80, {S_WAVE}"); a("s_lshl_b32 s80, s80, 6"); a(f"s_add_u32 s80, s80, {TS}")
        a("v_lshlrev_b32 v2, 2, v1")
        a("s_mov_b64 exec, 0xffff")
        a(f"buffer_store_dword v255, v2, {WS}, s80 offen")
    a.label("L_end")
    return a

HEAD = """; gated_mix decode: single persistent kernel, 256 workgroups x 512 threads (generated by work/gen4.py)
; @launch grid=(256,1,1) block=(512,1,1) lds=163840
.amdgcn_target "amdgcn-amd-amdhsa--gfx950"
.text
.globl {n}_kernel
.p2align 8
.type {n}_kernel,@function
{n}_kernel:
"""
TAIL = """s_endpgm
.section .rodata,"a"
.p2align 6
.amdhsa_kernel {n}_kernel
  .amdhsa_next_free_vgpr 256
  .amdhsa_next_free_sgpr 102
  .amdhsa_accum_offset 256
  .amdhsa_group_segment_fixed_size 0
  .amdhsa_kernarg_size 120
  .amdhsa_user_sgpr_count 2
  .amdhsa_user_sgpr_kernarg_segment_ptr 1
  .amdhsa_system_sgpr_workgroup_id_x 1
.end_amdhsa_kernel
"""
def full(dev=False, opt=None):
    a = gen(dev, opt)
    return HEAD.format(n=NAME) + a.text() + TAIL.format(n=NAME)

if __name__ == "__main__":
    opt = {}; name = ""
    for x in sys.argv[1:]:
        if "=" in x:
            k, v = x.split("="); opt[k] = int(v)
        else: name = x
    open(f"dev{name}.s", "w").write(full(True, opt))
    open(f"rel{name}.s", "w").write(full(False, opt))
    print("ok")
```
